```python
import torch

def _softmax(x, axis=-1):
    return torch.softmax(x, dim=axis)
def _gelu(x):
    return torch.nn.functional.gelu(x, approximate="tanh")
def _silu(x):
    return torch.nn.functional.silu(x)
def _sigmoid(x):
    return torch.sigmoid(x)
def _layernorm(x, axis=-1, eps=1e-5):
    m = x.mean(dim=axis, keepdim=True)
    v = x.var(dim=axis, keepdim=True, unbiased=False)
    return (x - m) / torch.sqrt(v + eps)
def _scatter_add(tgt, idx, src, axis=0):
    return tgt.clone().index_add_(axis, idx, src)
def _segment_sum(src, seg, n):
    out = torch.zeros((n,) + src.shape[1:], dtype=src.dtype)
    return out.index_add_(0, seg, src)
def _pad(x, pw):
    flat = tuple(v for pair in reversed(pw) for v in pair)
    return torch.nn.functional.pad(x, flat)

kernel_name = 'sequential_preLN__compressed_kv_cla__dense_activation_relu__prompt'

def setup_inputs():

    _w = (lambda a: (lambda t: t.to(torch.bfloat16) if t.is_floating_point() else t)(torch.as_tensor(a)))
    def _A_setup():
        B, H, Sq, Sk, D, M = 1, 32, 2048, 2048, 128, 512
        Dc = 4 * D
        return {
            "x": _w((lambda *s: torch.randn(*s, dtype=torch.bfloat16) * 0.05)(B, Sq, M)),
            "c_kv": _w((lambda *s: torch.randn(*s, dtype=torch.bfloat16) * 0.4)(B, Sk, Dc)),
            "w_q": _w((lambda *s: torch.randn(*s, dtype=torch.bfloat16) * 3.2)(M, H, D) * (M ** -0.5)),
            "w_uk": _w((lambda *s: torch.randn(*s, dtype=torch.bfloat16) * 3.2)(Dc, H, D) * (Dc ** -0.5)),
            "w_uv": _w((lambda *s: torch.randn(*s, dtype=torch.bfloat16) * 0.4)(Dc, H, D) * (Dc ** -0.5)),
            "w_o": _w((lambda *s: torch.randn(*s, dtype=torch.bfloat16) * 0.4)(H, D, M) * ((H * D) ** -0.5)),
        }
    _A_in = _A_setup()

    def _B_setup():
        B, S, D, Dff = 1, 2048, 512, 1792
        return {
            "x": _w((lambda *s: torch.randn(*s, dtype=torch.bfloat16) * 0.05)(B, S, D)),
            "w1": _w((lambda *s: torch.randn(*s, dtype=torch.bfloat16) * 0.05)(D, Dff)),
            "w2": _w((lambda *s: torch.randn(*s, dtype=torch.bfloat16) * 0.05)(Dff, D)),
        }
    _B_in = _B_setup()

    return {
        "A_x": _A_in["x"],
        "A_c_kv": _A_in["c_kv"],
        "A_w_q": _A_in["w_q"],
        "A_w_uk": _A_in["w_uk"],
        "A_w_uv": _A_in["w_uv"],
        "A_w_o": _A_in["w_o"],
        "B_x": _B_in["x"],
        "B_w1": _B_in["w1"],
        "B_w2": _B_in["w2"],
    }

def reference(A_x, A_c_kv, A_w_q, A_w_uk, A_w_uv, A_w_o, B_x, B_w1, B_w2):
    def _A_ref(x, c_kv, w_q, w_uk, w_uv, w_o):
        B, Sq, M = x.shape[0], x.shape[1], x.shape[2]
        Sk = c_kv.shape[1]
        H, D = w_q.shape[1], w_q.shape[2]
        q = torch.einsum("bqm,mhd->bhqd", x, w_q)
        k = torch.einsum("bkc,chd->bhkd", c_kv, w_uk)
        v = torch.einsum("bkc,chd->bhkd", c_kv, w_uv)
        scores = torch.einsum("bhqd,bhkd->bhqk", q, k) * (D ** -0.5)
        off = Sk - Sq
        qi = torch.arange(Sq)[:, None]
        kj = torch.arange(Sk)[None, :]
        cmask = kj <= (qi + off)
        scores = torch.where(cmask[None, None], scores, -1e9)
        p = _softmax(scores, axis=-1)
        ctx = torch.einsum("bhqk,bhkd->bhqd", p, v)
        return torch.einsum("bhqd,hdm->bqm", ctx, w_o)

    def _B_ref(x, w1, w2):
        h = torch.einsum("bsd,df->bsf", x, w1)
        zero = torch.zeros_like(h)
        h = torch.maximum(h, zero)
        return torch.einsum("bsf,fd->bsd", h, w2)

    x = A_x
    h = x + _A_ref(_layernorm(x, axis=-1), A_c_kv, A_w_q, A_w_uk, A_w_uv, A_w_o)
    h2 = h + _B_ref(_layernorm(h, axis=-1), B_w1, B_w2)
    return h2
```

```python
MB = 1 << 20
KF, VF, XNF, CTXF, WOF, W1F, W2F, HF, AF, STATS = 0, 16*MB, 32*MB, 36*MB, 52*MB, 56*MB, 58*MB, 60*MB, 62*MB, 70*MB
WS_SIZE = 0x10000000
KA = dict(x=0, ckv=8, wq=16, wuk=24, wuv=32, wo=40, bx=48, w1=56, w2=64, out=72, dbg=80, ws=88)
def srd(em, d, b, size, off=0):
    if off:
        em.e(f's_add_u32 s{d}, s{b}, {off}'); em.e(f's_addc_u32 s{d+1}, s{b+1}, 0')
    else:
        em.e(f's_mov_b32 s{d}, s{b}'); em.e(f's_mov_b32 s{d+1}, s{b+1}')
    em.e(f's_mov_b32 s{d+2}, {size}'); em.e(f's_mov_b32 s{d+3}, 0x20000')
def vr(a, n): return f'v[{a}:{a+n-1}]' if n > 1 else f'v{a}'
def mfma(d, a, b, c=None):
    cs = vr(d, 16) if c is None else (c if isinstance(c, str) else vr(c, 16))
    return f'v_mfma_f32_32x32x16_bf16 {vr(d,16)}, {vr(a,4)}, {vr(b,4)}, {cs}'
def row16_sum(em, v, op='add'):
    for m in ('quad_perm:[1,0,3,2]', 'quad_perm:[2,3,0,1]', 'row_half_mirror', 'row_mirror'):
        em.e(f'v_{op}_f32_dpp v{v}, v{v}, v{v} {m} row_mask:0xf bank_mask:0xf')
import os
STAMP = 128*MB
PROF = bool(int(os.environ.get('PROF', '0')))
def stamp(em, i):
    if not PROF: return
    lg = list(em.lg)
    em.wait(lg=0)
    em.e(f's_memtime s[{80+2*i}:{81+2*i}]')
    if i == 0: em.e('s_memrealtime s[96:97]')
    em.wait(lg=0)
    em.lg = lg
def stamp_out(em, kidx, srdws, swave, n, vt=0):
    if not PROF: return
    e = em.e
    em.wait(vm=0, lg=0)
    e(f's_memtime s[{80+2*n}:{81+2*n}]'); e('s_memrealtime s[98:99]'); em.wait(lg=0)
    e(f's_lshl_b32 s78, s2, 3'); e(f's_add_u32 s78, s78, s{swave}'); e('s_lshl_b32 s78, s78, 6')
    e(f's_add_u32 s78, s78, {STAMP + kidx*256*8*64}')
    e(f'v_mov_b32 v{vt}, 0')
    for i in range(1, n + 1):
        e(f's_sub_u32 s79, s{80+2*i}, s80'); e(f'v_mov_b32 v{vt+1}, s79')
        e(f'buffer_store_dword v{vt+1}, v{vt}, s[{srdws}:{srdws+3}], s78 offen offset:{4*i}')
    e(f'v_mov_b32 v{vt+1}, s96'); e(f'buffer_store_dword v{vt+1}, v{vt}, s[{srdws}:{srdws+3}], s78 offen offset:48')
    e(f'v_mov_b32 v{vt+1}, s98'); e(f'buffer_store_dword v{vt+1}, v{vt}, s[{srdws}:{srdws+3}], s78 offen offset:52')
```

```python
import re, copy
RX = re.compile(r'^(v|a|s)(\d+)$|^(v|a|s)\[(\d+):(\d+)\]$')
TRANS = ('v_exp_f32','v_log_f32','v_rcp_f32','v_rsq_f32','v_sqrt_f32','v_sin_f32','v_cos_f32')
def regs(tok):
    tok = tok.strip()
    if tok.startswith('-'): tok = tok[1:]
    if tok.startswith('|'): tok = tok.strip('|')
    if tok == 'vcc': return {('s', 106), ('s', 107)}
    if tok == 'vcc_lo': return {('s', 106)}
    if tok == 'exec': return {('s', 126), ('s', 127)}
    if tok == 'm0': return {('s', 124)}
    m = RX.match(tok)
    if not m: return set()
    if m.group(1): return {(m.group(1), int(m.group(2)))}
    return {(m.group(3), i) for i in range(int(m.group(4)), int(m.group(5)) + 1)}
def split_ops(s):
    out, cur, d = [], '', 0
    for ch in s:
        if ch == '[': d += 1
        if ch == ']': d -= 1
        if ch == ',' and d == 0: out.append(cur.strip()); cur = ''
        else: cur += ch
    if cur.strip(): out.append(cur.strip())
    return out
class I:
    def __init__(s, text):
        s.text = text
        p = text.split(None, 1)
        s.op = op = p[0]
        rest = p[1] if len(p) > 1 else ''
        ops = split_ops(rest)
        mods = ''
        if ops:
            last = ops[-1].split(None, 1)
            ops[-1] = last[0]
            mods = last[1] if len(last) > 1 else ''
        s.mods = mods
        R = [regs(o) for o in ops]
        s.w = set(); s.r = set(); s.ab = set(); s.c = set(); s.kind = 'other'; s.states = 1
        s.data = set()
        if op.startswith('v_mfma'):
            s.kind = 'mfma'; s.w = R[0]; s.ab = R[1] | R[2]; s.c = R[3]; s.r = s.ab | s.c
            s.passes = 8 if '32x32' in op else 4
        elif op.startswith('v_'):
            s.kind = 'valu'; s.w = set(R[0]); s.r = set().union(*R[1:]) if len(R) > 1 else set()
            if op.startswith('v_permlane') and 'swap' in op: s.w = R[0] | R[1]; s.r = R[0] | R[1]
            if op.startswith(('v_fmac', 'v_mac', 'v_dot2c', 'v_writelane')): s.r |= R[0]
            if 'dpp' in op or 'row_' in mods or 'quad_perm' in mods: s.dpp = True; s.r |= R[0]
            if op.startswith('v_cndmask') and len(ops) == 3: s.r |= regs('vcc')
            if op.startswith(('v_add_co', 'v_sub_co', 'v_addc_co')): s.w |= R[1]
            if op == 'v_nop': s.w = set()
        elif op.startswith('ds_'):
            s.kind = 'ds'
            if op.startswith(('ds_read', 'ds_bpermute', 'ds_permute', 'ds_swizzle')): s.w = R[0]; s.r = set().union(*R[1:])
            else: s.r = set().union(*R)
        elif op.startswith('buffer_'):
            s.kind = 'vm'
            lds = ' lds' in (' ' + mods)
            if op.startswith('buffer_load') and not lds: s.w = R[0]; s.r = set().union(*R[1:])
            elif lds: s.r = set().union(*R) | regs('m0'); s.dma = True
            elif op.startswith(('buffer_wbl2', 'buffer_inv')): pass
            else:
                s.r = set().union(*R); s.data = R[0]
                if op.startswith('buffer_atomic') and 'sc0' in mods: s.w = R[0]
        elif op == 's_nop':
            s.kind = 'nop'; s.states = int(ops[0]) + 1
        elif op.startswith(('s_load', 's_memtime', 's_memrealtime', 's_buffer_load')):
            s.kind = 'smem'; s.w = R[0]; s.r = set().union(*R[1:]) if len(R) > 1 else set()
        elif op.startswith('s_'):
            s.kind = 'salu'
            if op.startswith(('s_cmp', 's_cbranch', 's_branch', 's_waitcnt', 's_barrier', 's_endpgm', 's_setprio', 's_sleep', 's_bitcmp')):
                s.r = set().union(*R) if R else set()
            else:
                s.w = R[0]; s.r = set().union(*R[1:]) if len(R) > 1 else set()
                if 'saveexec' in op: s.w = s.w | regs('exec')
        s.trans = op.replace('_e32', '').replace('_e64', '') in TRANS
def need(p, c):
    n = 0
    vw = {x for x in p.w if x[0] != 's'}
    sw = {x for x in p.w if x[0] == 's'}
    if p.kind == 'valu':
        if c.kind == 'mfma' and vw & c.r: n = max(n, 2)
        if c.kind == 'mfma' and sw & regs('exec'): n = max(n, 4)
        if c.kind == 'valu':
            if p.trans and not c.trans and vw & c.r: n = max(n, 1)
            if sw & c.r: n = max(n, 4 if c.op.startswith(('v_readlane', 'v_writelane')) else 2)
            if c.op.startswith(('v_readlane', 'v_readfirstlane')) and vw & c.r: n = max(n, 1)
            if c.op.startswith('v_permlane') and vw & c.r: n = max(n, 2)
            if getattr(c, 'dpp', False) and vw & c.r: n = max(n, 2)
            if 'op_sel' in p.mods or 'sdwa' in p.op:
                if vw & (c.r | c.w): n = max(n, 1)
        if c.kind == 'vm' and sw & c.r: n = max(n, 5)
        if c.kind in ('salu', 'smem') and sw & c.r and not c.op.startswith('s_cbranch'): n = max(n, 1)
        if p.trans and c.kind in ('vm', 'ds', 'mfma') and vw & c.r: n = max(n, 2)
    if p.kind == 'mfma':
        big = {8: 12, 4: 8}[p.passes]
        if c.kind == 'mfma':
            if p.w & c.ab: n = max(n, big)
            if p.w & c.c and not (p.w == c.c and p.passes == c.passes): n = max(n, big - 2)
            if p.w & c.w and not (p.w == c.w): n = max(n, big - 2)
            if p.w & c.w and p.w == c.w and c.c != c.w: n = max(n, 0)
        elif c.kind in ('valu', 'vm', 'ds'):
            if p.w & (c.r | c.w): n = max(n, big)
            if p.c & c.w: n = max(n, {8: 7, 4: 3}[p.passes])
    if p.kind == 'salu' and sw & regs('m0') and getattr(c, 'dma', False): n = max(n, 1)
    if p.kind == 'vm' and len(p.data) >= 3 and p.data & c.w: n = max(n, 2)
    if p.kind == 'ds' and p.op.startswith('ds_write') and c.kind == 'valu' and ('b128' in p.op or 'b96' in p.op) and (p.r & c.w): n = max(n, 1)
    return n
class Em:
    def __init__(s):
        s.lines = []; s.launches = []; s.descs = []; s.lab = 0
        s.hist = []
        s.lg = []
        s.vm = []
        s.ninstr = 0; s.nnop = 0
    def state(s): return (list(s.hist), list(s.lg), list(s.vm))
    def set_state(s, st): s.hist, s.lg, s.vm = list(st[0]), list(st[1]), list(st[2])
    def raw(s, t):
        i = I(t); s.lines.append('    ' + t); s.hist.append(i); s.hist = s.hist[-24:]; s.ninstr += 1
        return i
    def _wait(s, vm=None, lg=None):
        parts = []
        if vm is not None and vm < len(s.vm):
            assert vm <= 63; parts.append(f'vmcnt({vm})'); s.vm = s.vm[len(s.vm) - vm:] if vm else []
        if lg is not None and lg < len(s.lg):
            lg = min(lg, 15); parts.append(f'lgkmcnt({lg})'); s.lg = s.lg[len(s.lg) - lg:] if lg else []
        if parts: s.raw('s_waitcnt ' + ' '.join(parts))
    def wait(s, vm=None, lg=None): s._wait(vm, lg)
    def wait_force(s, txt):
        s.raw('s_waitcnt ' + txt)
        m = re.search(r'vmcnt\((\d+)\)', txt)
        if m:
            n = int(m.group(1)); s.vm = s.vm[max(0, len(s.vm) - n):] if n else []
        m = re.search(r'lgkmcnt\((\d+)\)', txt)
        if m:
            n = int(m.group(1)); s.lg = s.lg[max(0, len(s.lg) - n):] if n else []
    def wait_tag(s, tag, lg=None):
        idx = [k for k, (d, t) in enumerate(s.vm) if t == tag]
        vm = (len(s.vm) - 1 - idx[-1]) if idx else None
        s._wait(vm, lg)
    def e(s, t, tag=None):
        i = I(t)
        touch = i.r | i.w
        vm = lg = None
        for k, (d, _) in enumerate(s.vm):
            if d & touch: vm = len(s.vm) - 1 - k
        for k, (d, _) in enumerate(s.lg):
            if d & touch: lg = len(s.lg) - 1 - k
        if any(tg == 'smem' for _, tg in s.lg) and lg is not None: lg = 0
        if vm is not None and vm > 63: vm = 63
        s._wait(vm, lg)
        dist = 0; pad = 0
        for p in reversed(s.hist):
            n = need(p, i)
            if n > dist: pad = max(pad, n - dist)
            dist += p.states
            if dist >= 20: break
        while pad > 0:
            k = min(pad, 16); s.raw(f's_nop {k-1}'); pad -= k; s.nnop += 1
        s.raw(t)
        if i.kind == 'ds': s.lg.append((set(i.w), tag))
        elif i.kind == 'smem': s.lg.append((set(i.w), 'smem'))
        elif i.kind == 'vm': s.vm.append((set(i.w), tag))
        if len(s.vm) > 63: pass
        return i
    def c(s, t): s.lines.append('    ; ' + t)
    def label(s, l): s.lines.append(l + ':')
    def newlabel(s, p='L'): s.lab += 1; return f'{p}_{s.lab}'
    def align(s, n=6): s.lines.append(f'.p2align {n}')
    def flush_hazards(s):
        s.raw('s_nop 15'); s.hist = []
    def sig(s): return ([(frozenset(d), t) for d, t in s.lg], [(frozenset(d), t) for d, t in s.vm])
    def check_backedge(s, head_lines):
        h = list(s.hist)
        for t in head_lines:
            t = t.strip()
            if not t or t.startswith((';', '.')) or t.endswith(':'): continue
            i = I(t); dist = 0
            for p in reversed(h):
                n = need(p, i)
                assert n <= dist, f'backedge hazard: {p.text} -> {t} need {n} have {dist}'
                dist += p.states
                if dist >= 20: break
            h.append(i)
    def begin_kernel(s, name):
        s.lines += ['.text', f'.globl {name}', '.p2align 8', f'.type {name},@function', f'{name}:']
        s.hist = []; s.lg = []; s.vm = []
    def end_kernel(s, name, vgpr, accum, sgpr=102):
        s.descs.append(f""".amdhsa_kernel {name}
  .amdhsa_next_free_vgpr {vgpr}
  .amdhsa_next_free_sgpr {sgpr}
  .amdhsa_accum_offset {accum}
  .amdhsa_group_segment_fixed_size 0
  .amdhsa_kernarg_size 96
  .amdhsa_user_sgpr_count 2
  .amdhsa_user_sgpr_kernarg_segment_ptr 1
  .amdhsa_system_sgpr_workgroup_id_x 1
  .amdhsa_float_denorm_mode_32 3
  .amdhsa_float_denorm_mode_16_64 3
.end_amdhsa_kernel""")
    def launch(s, name, grid, block, lds):
        s.launches.append(f'; @launch kernel={name} grid=({grid},1,1) block=({block},1,1) lds={lds}')
    def text(s, header=''):
        out = []
        if header: out.append(header.rstrip())
        out += s.launches
        out.append('.amdgcn_target "amdgcn-amd-amdhsa--gfx950"')
        out += s.lines
        out.append('.section .rodata,"a"')
        for d in s.descs:
            out.append('.p2align 6'); out.append(d)
        return '\n'.join(out) + '\n'
def weave(em, main, fill, start=0, per=None):
    def put(x):
        if x is None: return
        if callable(x): x()
        elif isinstance(x, list):
            for y in x: put(y)
        elif isinstance(x, tuple): em.e(x[0], tag=x[1])
        else: em.e(x)
    n = len(main) - start
    k = 0
    for i, m in enumerate(main):
        put(m)
        if i >= start:
            j = i - start + 1
            tgt = (len(fill) * j + n - 1) // n if per is None else min(len(fill), per * j)
            while k < tgt: put(fill[k]); k += 1
    while k < len(fill): put(fill[k]); k += 1
```

```python
from em import *
from common import *
def gen_k1(em, name='kv_kernel'):
    e = em.e
    em.begin_kernel(name)
    END = em.newlabel('k1end')
    e('s_cmp_ge_u32 s2, 256'); e(f's_cbranch_scc1 {END}')
    stamp(em, 0)
    e('s_load_dwordx4 s[4:7], s[0:1], 0')
    e('s_load_dwordx4 s[8:11], s[0:1], 24')
    e('s_load_dwordx2 s[12:13], s[0:1], 40')
    e('s_load_dwordx4 s[16:19], s[0:1], 56')
    e('s_load_dwordx2 s[14:15], s[0:1], 88')
    e('v_and_b32 v1, 63, v0')
    e('v_lshrrev_b32 v2, 6, v0')
    e('v_readfirstlane_b32 s44, v2')
    e('s_and_b32 s45, s2, 7'); e('s_lshl_b32 s45, s45, 2')
    e('s_lshr_b32 s46, s2, 3'); e('s_and_b32 s47, s46, 3'); e('s_add_u32 s45, s45, s47')
    e('s_lshr_b32 s46, s46, 2')
    e('v_lshrrev_b32 v3, 4, v1')
    e('v_and_b32 v4, 3, v1')
    e('v_lshrrev_b32 v5, 2, v1')
    e('v_and_b32 v6, 3, v5')
    e('v_xor_b32 v7, v4, v3'); e('v_lshlrev_b32 v7, 4, v7')
    e('v_lshlrev_b32 v10, 10, v5'); e('v_add_u32 v10, v10, v7')
    e('s_lshl_b32 s48, s46, 18'); e('s_lshl_b32 s49, s44, 15'); e('s_add_u32 s48, s48, s49')
    e('v_add_u32 v10, s48, v10')
    e('v_xor_b32 v8, v6, v3'); e('v_lshlrev_b32 v8, 6, v8'); e('v_lshlrev_b32 v9, 4, v4'); e('v_add_u32 v8, v8, v9')
    e('v_lshlrev_b32 v11, 13, v3'); e('v_add_u32 v11, v11, v8')
    e('s_lshl_b32 s48, s44, 15'); e('s_lshl_b32 s49, s45, 8'); e('s_add_u32 s48, s48, s49')
    e('v_add_u32 v11, s48, v11')
    em.wait(lg=0)
    stamp(em, 1)
    srd(em, 20, 6, 0x200000); srd(em, 24, 8, 0x400000); srd(em, 28, 10, 0x400000)
    srd(em, 32, 14, WS_SIZE); srd(em, 40, 4, 0x200000)
    e('s_lshl_b32 s50, s2, 3'); e('s_add_u32 s50, s50, s44')
    e('s_lshl_b32 s48, s50, 10')
    e('v_lshlrev_b32 v12, 4, v1')
    e('buffer_load_dwordx4 v[200:203], v12, s[40:43], s48 offen')
    e('s_min_u32 s55, s50, 1919')
    L1, L2, LJ = em.newlabel('t'), em.newlabel('t'), em.newlabel('t')
    e('s_cmp_ge_u32 s55, 1024'); e(f's_cbranch_scc1 {L1}')
    st = em.state()
    srd(em, 36, 12, 0x400000); e('s_mov_b32 s51, 1024')
    e('s_lshr_b32 s56, s55, 2'); e('s_and_b32 s57, s55, 3')
    e(f's_mov_b32 s53, {WOF}'); e(f's_mov_b32 s54, {256*1024}'); e(f's_branch {LJ}')
    em.label(L1); em.set_state(st)
    e('s_cmp_ge_u32 s55, 1472'); e(f's_cbranch_scc1 {L2}')
    srd(em, 36, 16, 512*3584); e('s_mov_b32 s51, 3584')
    e('s_sub_u32 s55, s55, 1024'); e('s_mul_i32 s56, s55, 4682'); e('s_lshr_b32 s56, s56, 16')
    e('s_mul_i32 s57, s56, 14'); e('s_sub_u32 s57, s55, s57')
    e(f's_mov_b32 s53, {W1F}'); e(f's_mov_b32 s54, {32*1024}'); e(f's_branch {LJ}')
    em.label(L2); em.set_state(st)
    srd(em, 36, 18, 1792*1024); e('s_mov_b32 s51, 1024')
    e('s_sub_u32 s55, s55, 1472'); e('s_lshr_b32 s56, s55, 2'); e('s_and_b32 s57, s55, 3')
    e(f's_mov_b32 s53, {W2F}'); e(f's_mov_b32 s54, {112*1024}')
    em.label(LJ)
    e('s_mul_i32 s52, s56, s51'); e('s_lshl_b32 s52, s52, 4'); e('s_lshl_b32 s58, s57, 8'); e('s_add_u32 s52, s52, s58')
    e('s_lshl_b32 s58, s57, 2'); e('s_mul_i32 s58, s58, s54'); e('s_add_u32 s53, s53, s58')
    e('s_lshl_b32 s58, s56, 10'); e('s_add_u32 s53, s53, s58')
    e('v_mul_lo_u32 v13, v3, s51'); e('v_add_u32 v13, v13, v8')
    e('s_lshl_b32 s59, s44, 12'); e('s_add_u32 s59, s59, 131072')
    e('s_lshl_b32 s58, s51, 2')
    for i in range(4):
        e(f's_add_u32 m0, s59, {i*1024}')
        e('buffer_load_dwordx4 v13, s[36:39], s52 offen lds', tag='tr')
        if i < 3: e('s_add_u32 s52, s52, s58')
    e('s_lshl_b32 s60, s44, 11')
    e('s_lshl_b32 s61, s44, 10')
    def dma(c):
        sl = (c & 3) * 32768
        return [[f's_add_u32 m0, s60, {sl}', f's_mov_b32 s62, {c*64}', (f'buffer_load_dwordx4 v10, s[20:23], s62 offen lds', f'c{c}')],
                [f's_add_u32 m0, s60, {sl+1024}', f's_mov_b32 s62, {c*64+16384}', (f'buffer_load_dwordx4 v10, s[20:23], s62 offen lds', f'c{c}')],
                [f's_add_u32 m0, s61, {sl+16384}', f's_mov_b32 s62, {c*32*8192}', (f'buffer_load_dwordx4 v11, s[24:27], s62 offen lds', f'c{c}')],
                [f's_add_u32 m0, s61, {sl+24576}', (f'buffer_load_dwordx4 v11, s[28:31], s62 offen lds', f'c{c}')]]
    for c in range(4): weave(em, [], dma(c))
    stamp(em, 2)
    e('v_and_b32 v18, 31, v1'); e('v_lshrrev_b32 v19, 5, v1')
    e('v_xor_b32 v14, v19, v6'); e('v_lshlrev_b32 v14, 4, v14')
    e('v_lshlrev_b32 v20, 6, v18'); e('v_add_u32 v14, v14, v20')
    e('s_and_b32 s48, s44, 3'); e('s_lshl_b32 s48, s48, 12')
    e('v_add_u32 v14, s48, v14')
    e('v_xor_b32 v15, 32, v14')
    e('v_add_u32 v16, 0x10000, v14'); e('v_add_u32 v17, 0x10000, v15')
    e('v_and_b32 v28, 1, v3'); e('v_lshlrev_b32 v28, 5, v28'); e('v_lshlrev_b32 v29, 3, v4'); e('v_add_u32 v28, v28, v29')
    e('v_lshlrev_b32 v29, 8, v6'); e('v_add_u32 v28, v28, v29')
    e('v_lshlrev_b32 v29, 11, v19'); e('v_add_u32 v30, v28, v29')
    e('v_lshlrev_b32 v29, 10, v19'); e('v_add_u32 v31, v28, v29')
    e('s_lshr_b32 s48, s44, 2'); e('s_lshl_b32 s48, s48, 13'); e('s_add_u32 s48, s48, 16384')
    for db in range(4):
        e(f'v_xor_b32 v29, {db}, v6'); e('v_lshlrev_b32 v29, 6, v29')
        e(f'v_add3_u32 v{20+db}, v30, v29, s48')
        e(f'v_add_u32 v{24+db}, 0x10000, v{20+db}')
        e(f'v_add3_u32 v{204+db}, v31, v29, s59')
    for j in range(4):
        e(f'v_lshlrev_b32 v{208+2*j}, 16, v{200+j}'); e(f'v_and_b32 v{209+2*j}, 0xffff0000, v{200+j}')
    stamp(em, 3)
    def allsum(v):
        row16_sum(em, v)
        for k in range(4): e(f'v_readlane_b32 s{64+k}, v{v}, {16*k}')
        e(f'v_mov_b32 v{v}, s64'); e(f'v_add_f32 v{v}, s65, v{v}'); e(f'v_add_f32 v{v}, s66, v{v}'); e(f'v_add_f32 v{v}, s67, v{v}')
    e('v_add_f32 v216, v208, v209')
    for j in range(2, 8): e(f'v_add_f32 v216, v216, v{208+j}')
    allsum(216)
    e('v_mul_f32 v216, 0x3b000000, v216')
    for j in range(8): e(f'v_sub_f32 v{208+j}, v{208+j}, v216')
    e('v_mul_f32 v217, v208, v208')
    for j in range(1, 8): e(f'v_fmac_f32 v217, v{208+j}, v{208+j}')
    allsum(217)
    e('v_mov_b32 v218, 0x3727c5ac')
    e('v_fmac_f32 v218, 0x3b000000, v217')
    e('v_rsq_f32 v218, v218')
    for j in range(8): e(f'v_mul_f32 v{208+j}, v{208+j}, v218')
    for j in range(4): e(f'v_cvt_pk_bf16_f32 v{200+j}, v{208+2*j}, v{209+2*j}')
    e('v_lshrrev_b32 v216, 1, v1'); e('v_lshlrev_b32 v216, 10, v216')
    e('v_and_b32 v217, 1, v1'); e('v_lshlrev_b32 v217, 9, v217'); e('v_add_u32 v216, v216, v217')
    e('s_lshr_b32 s48, s50, 5'); e('s_lshl_b32 s48, s48, 15'); e('s_and_b32 s49, s50, 31'); e('s_lshl_b32 s49, s49, 4')
    e('s_add_u32 s48, s48, s49'); e(f's_add_u32 s48, s48, {XNF}')
    e('buffer_store_dwordx4 v[200:203], v216, s[32:35], s48 offen')
    em.wait_tag('tr')
    stamp(em, 4)
    for db in range(4):
        e(f'ds_read_b64_tr_b16 v[{220+4*db}:{221+4*db}], v{204+db}')
        e(f'ds_read_b64_tr_b16 v[{222+4*db}:{223+4*db}], v{204+db} offset:2048')
    for db in range(4):
        e(f'buffer_store_dwordx4 v[{220+4*db}:{223+4*db}], v12, s[32:35], s53 offen')
        if db < 3: e('s_add_u32 s53, s53, s54')
    ACC = 128
    def acc(db, t): return ACC + 16 * (db * 2 + t)
    FC = [32, 56]; FW = [40, 64]
    def reads(c, ks):
        sl = (c & 3) * 32768; hi = sl >= 65536; o = sl & 0xffff
        ca = (16 if hi else 14) + ks; wa = 24 if hi else 20
        r = []
        r.append(f'ds_read_b128 {vr(FC[ks],4)}, v{ca} offset:{o}')
        for db in range(4):
            r.append(f'ds_read_b64_tr_b16 {vr(FW[ks]+4*db,2)}, v{wa+db} offset:{o+ks*4096}')
            r.append(f'ds_read_b64_tr_b16 {vr(FW[ks]+4*db+2,2)}, v{wa+db} offset:{o+ks*4096+1024}')
            if db == 0: r.append(f'ds_read_b128 {vr(FC[ks]+4,4)}, v{ca} offset:{o+2048}')
        return r
    em.wait_tag('c0')
    stamp(em, 5)
    e('s_barrier')
    weave(em, [], reads(0, 0))
    LV = em.newlabel('k1v')
    e('s_cmp_ge_u32 s44, 4'); e(f's_cbranch_scc1 {LV}')
    st = em.state()
    for role in (0, 1):
        if role == 1: em.label(LV); em.set_state(st)
        def mf(c, ks):
            out = []
            for db in range(4):
                for t in range(2):
                    w, cf = FW[ks] + 4 * db, FC[ks] + 4 * t
                    z = '0' if (c == 0 and ks == 0) else None
                    out.append(mfma(acc(db, t), w, cf, z) if role == 0 else mfma(acc(db, t), cf, w, z))
            return out
        for c in range(16):
            weave(em, mf(c, 0), reads(c, 1), per=2)
            m = mf(c, 1)
            if c < 15:
                em.wait(lg=0)
                e(m[0]); e(m[1])
                em.wait_tag(f'c{c+1}'); e('s_barrier')
                fill = reads(c + 1, 0)
                if c + 4 < 16:
                    d = dma(c + 4); fill = fill[:6] + [d[0]] + fill[6:8] + [d[1]] + fill[8:] + d[2:]
                weave(em, [None] + m[2:], fill)
            else:
                weave(em, m, [])
        stamp(em, 6)
        if role == 0:
            e('s_lshl_b32 s48, s45, 6'); e('s_lshl_b32 s49, s46, 3'); e('s_add_u32 s48, s48, s49')
            e('s_lshl_b32 s49, s44, 1'); e('s_add_u32 s48, s48, s49'); e('s_lshl_b32 s48, s48, 13')
            if KF: e(f's_add_u32 s48, s48, {KF}')
        else:
            e('s_lshl_b32 s48, s45, 6'); e('s_lshl_b32 s49, s46, 3'); e('s_add_u32 s48, s48, s49')
            e('s_and_b32 s49, s44, 3'); e('s_lshl_b32 s49, s49, 1'); e('s_add_u32 s48, s48, s49'); e('s_lshl_b32 s48, s48, 13')
            e(f's_add_u32 s48, s48, {VF}')
        k = 0
        for db in range(4):
            for t in range(2):
                for hf in range(2):
                    a = acc(db, t) + 8 * hf; d = 32 + 4 * (k % 8); k += 1
                    for j in range(4): e(f'v_cvt_pk_bf16_f32 v{d+j}, v{a+2*j}, v{a+2*j+1}')
                    off = (t * 8 + 2 * db + hf) * 1024 if role == 0 else ((t * 2 + hf) * 4 + db) * 1024
                    e(f's_add_u32 s49, s48, {off}')
                    e(f'buffer_store_dwordx4 {vr(d,4)}, v12, s[32:35], s49 offen')
        stamp_out(em, 0, 32, 44, 7)
        e('s_endpgm')
    em.label(END); e('s_endpgm')
    em.end_kernel(name, 256, 256)
    em.launch(name, 256, 512, 163840)
```

```python
from em import *
from common import *
import struct
def f2u(x): return struct.unpack('<I', struct.pack('<f', x))[0]
QSCALE = f2u(128 ** -0.5 * 1.4426950408889634)
Q_, O_, S_, P_, NM, FB = 16, 48, [112, 128], [144, 152], 160, 176
L_ = [7, 8]; T_ = [10, 11, 12, 13]
XB = 98304
OOB = 0x40000000
ORDER = [('k',0),('v',0),('k',1),('k',2),('v',1),('k',3),('k',4),('v',2),('k',5),('k',6),('v',3),('k',7),('v',4),('v',5),('v',6),('v',7)]
BUF = {f: FB + 4 * i for i, f in enumerate(ORDER)}
def gen_k2(em, name='attn_kernel'):
    e = em.e
    em.begin_kernel(name)
    END = em.newlabel('k2end')
    e('s_cmp_ge_u32 s2, 256'); e(f's_cbranch_scc1 {END}')
    stamp(em, 0)
    e('s_load_dwordx2 s[4:5], s[0:1], 16')
    e('s_load_dwordx2 s[14:15], s[0:1], 88')
    e('v_and_b32 v1, 63, v0'); e('v_lshrrev_b32 v2, 6, v0'); e('v_readfirstlane_b32 s44, v2')
    e('s_and_b32 s45, s2, 7'); e('s_lshl_b32 s45, s45, 2')
    e('s_lshr_b32 s46, s2, 3'); e('s_and_b32 s47, s46, 3'); e('s_add_u32 s45, s45, s47')
    e('s_lshr_b32 s46, s46, 2')
    e('s_sub_u32 s47, 15, s46')
    e('s_lshr_b32 s40, s44, 2'); e('s_and_b32 s41, s44, 3')
    e('v_lshlrev_b32 v4, 4, v1')
    e('s_lshl_b32 s60, s44, 11')
    e('v_add_u32 v5, s60, v4')
    e('s_lshl_b32 s48, s40, 13'); e('v_add_u32 v3, s48, v4')
    e('v_lshrrev_b32 v10, 4, v1'); e('v_and_b32 v11, 3, v1'); e('v_lshrrev_b32 v12, 2, v1'); e('v_and_b32 v12, 3, v12')
    e('v_xor_b32 v13, v12, v10'); e('v_lshlrev_b32 v13, 6, v13'); e('v_lshlrev_b32 v14, 4, v11'); e('v_add_u32 v13, v13, v14')
    e('v_lshlrev_b32 v9, 13, v10'); e('v_add_u32 v9, v9, v13')
    e('s_lshl_b32 s48, s44, 17'); e('s_lshl_b32 s49, s45, 8'); e('s_add_u32 s48, s48, s49')
    e('v_add_u32 v9, s48, v9')
    e('v_lshrrev_b32 v15, 5, v1')
    e('v_and_b32 v14, 1, v10'); e('v_lshlrev_b32 v14, 5, v14'); e('v_lshlrev_b32 v13, 3, v11'); e('v_add_u32 v14, v14, v13')
    e('v_lshlrev_b32 v13, 8, v12'); e('v_add_u32 v14, v14, v13'); e('v_lshlrev_b32 v13, 11, v15'); e('v_add_u32 v14, v14, v13')
    e('v_add_u32 v14, 0x8000, v14')
    for db in range(4):
        e(f'v_xor_b32 v13, {db}, v12'); e('v_lshlrev_b32 v13, 6, v13')
        e(f'v_add_u32 v{240+db}, v14, v13'); e(f'v_add_u32 v{244+db}, 0x10000, v{240+db}')
    e('s_sub_u32 s48, s41, s40'); e('s_lshl_b32 s48, s48, 5')
    e('v_and_b32 v6, 31, v1'); e('v_lshlrev_b32 v13, 2, v15'); e('v_sub_u32 v6, v6, v13'); e('v_add_u32 v6, s48, v6')
    em.wait(lg=0)
    srd(em, 20, 4, 0x400000); srd(em, 32, 14, WS_SIZE)
    e('s_mov_b32 s50, 0'); e('s_lshl_b32 s51, s47, 1'); e('s_add_u32 s51, s51, 2')
    e('s_lshl_b32 s52, s46, 1'); e('s_add_u32 s52, s52, 2'); e('s_mov_b32 s53, s60')
    e('s_lshl_b32 s54, s45, 19'); e(f's_add_u32 s55, s54, {VF - 32768}')
    if KF: e(f's_add_u32 s54, s54, {KF}')
    e(f's_mov_b32 s58, {OOB}'); e(f's_add_u32 s59, s60, 98304')
    def pkg():
        return [['s_lshl_b32 s56, s50, 14', 's_add_u32 s57, s56, s55', 's_add_u32 s56, s56, s54',
                 's_cmp_lt_u32 s50, s51', 's_cselect_b32 s56, s56, s58', 's_mov_b32 m0, s53', 's_cmp_ge_u32 s50, 2',
                 ('buffer_load_dwordx4 v5, s[32:35], s56 offen lds', 'pk')],
                [('buffer_load_dwordx4 v5, s[32:35], s56 offen offset:1024 lds', 'pk'),
                 's_cselect_b32 s57, s57, s58', 's_add_u32 m0, s53, 16384', 's_add_u32 s50, s50, 1'],
                [('buffer_load_dwordx4 v5, s[32:35], s57 offen lds', 'pk'),
                 's_add_u32 s56, s51, 2', 's_cmp_eq_u32 s50, s56', 's_cselect_b32 s50, 0, s50', 's_cselect_b32 s51, s52, s51', 's_cselect_b32 s52, 0, s52'],
                [('buffer_load_dwordx4 v5, s[32:35], s57 offen offset:1024 lds', 'pk'),
                 's_add_u32 s53, s53, 32768', 's_cmp_eq_u32 s53, s59', 's_cselect_b32 s53, s60, s53']]
    e('s_cmp_eq_u32 s40, 0'); e('s_cselect_b32 s48, s47, s46'); e('s_lshl_b32 s48, s48, 2'); e('s_add_u32 s48, s48, s41')
    e('s_lshl_b32 s48, s48, 15'); e(f's_add_u32 s48, s48, {XNF}')
    e('s_lshl_b32 s61, s44, 12'); e('s_add_u32 s61, s61, 32768')
    XF = 112
    for q in range(4):
        for i in range(4):
            e(f's_add_u32 m0, s61, {q*32768 + i*1024}'); e(f's_mov_b32 s49, {(q*128 + i*4)*8192}')
            e('buffer_load_dwordx4 v9, s[20:23], s49 offen lds', tag=f'wq{q}')
        for k in range(8 * q, 8 * q + 8):
            if k % 4 == 0 and k: e('s_add_u32 s48, s48, 4096')
            e(f'buffer_load_dwordx4 {vr(XF+4*k,4)}, v4, s[32:35], s48 offen offset:{(k%4)*1024}')
        if q == 0: weave(em, [], pkg())
    stamp(em, 1)
    WF = [16, 32]
    def wreads(k):
        o = k * 4096; a = 244 if o >= 65536 else 240; o &= 0xffff
        r = []
        for db in range(4):
            r.append(f'ds_read_b64_tr_b16 {vr(WF[k&1]+4*db,2)}, v{a+db} offset:{o}')
            r.append(f'ds_read_b64_tr_b16 {vr(WF[k&1]+4*db+2,2)}, v{a+db} offset:{o+1024}')
        return r
    em.wait_tag('wq0'); e('s_barrier')
    stamp(em, 2)
    weave(em, [], wreads(0))
    for k in range(32):
        m = [mfma(O_ + 16 * db, WF[k&1] + 4 * db, XF + 4 * k, '0' if k == 0 else None) for db in range(4)]
        if k % 8 == 7 and k < 31:
            em.wait(lg=0); e(m[0])
            em.wait_tag(f'wq{k//8+1}'); e('s_barrier')
            fill = wreads(k + 1)
            if k in (7, 15): fill = fill + pkg()
            weave(em, [None] + m[1:], fill)
        elif k < 31: weave(em, m, wreads(k + 1))
        else: weave(em, m, [])
    e('s_barrier')
    e(f's_mov_b32 s48, {QSCALE}')
    e('s_lshl_b32 s49, s44, 13'); e(f's_add_u32 s49, s49, {XB}'); e('v_add_u32 v9, s49, v4')
    for dg in range(8):
        a = O_ + 8 * dg; d = XF + 4 * dg
        for j in range(8): e(f'v_mul_f32 v{a+j}, s48, v{a+j}')
        for j in range(4): e(f'v_cvt_pk_bf16_f32 v{d+j}, v{a+2*j}, v{a+2*j+1}')
        e(f'ds_write_b128 v9, {vr(d,4)} offset:{dg*1024}')
    e('s_xor_b32 s49, s44, 4'); e('s_lshl_b32 s49, s49, 13'); e(f's_add_u32 s49, s49, {XB}'); e('v_add_u32 v15, s49, v4')
    e('s_lshl_b32 s49, s41, 13'); e(f's_add_u32 s49, s49, {XB}'); e('v_add_u32 v14, s49, v4')
    e('s_mov_b32 s62, 0')
    e('v_mov_b32 v2, v3')
    e('s_mov_b32 s63, s47'); e('s_mov_b32 s43, 0')
    e(f's_mov_b32 s64, {f2u(2.0**60)}'); e('s_mov_b32 s65, 0xff800000')
    em.wait_force('vmcnt(8) lgkmcnt(0)'); e('s_barrier')
    stamp(em, 3)
    def rd(f):
        t, i = f
        off = i * 1024 if t == 'k' else 16384 + i * 1024
        return f'ds_read_b128 {vr(BUF[f],4)}, v2 offset:{off}'
    for dg in range(8): e(f'ds_read_b128 {vr(Q_+4*dg,4)}, v14 offset:{dg*1024}')
    for i in range(8): e(rd(('k', i)))
    em.wait(lg=0); em.vm = []
    fallbacks = []
    def softmax_fill(p, masked_thr=None):
        S, P = S_[p], P_[p]; out = []
        for i in range(17):
            g = []
            if i < 16: g.append(f'v_exp_f32 v{T_[i%4]}, v{S+i}')
            if i >= 1:
                k = i - 1
                g.append(f'v_add_f32 v{L_[p]}, v{L_[1-p] if k == 0 else L_[p]}, v{T_[k%4]}')
                if k & 1: g.append(f'v_cvt_pk_bf16_f32 v{P+k//2}, v{T_[(k-1)%4]}, v{T_[k%4]}')
            out.append(g)
        return out
    def mask_ops(p, thr):
        S = S_[p]; out = []
        for i in range(18):
            g = []
            if i < 16: g.append(f'v_cmp_le_i32 s[{66+2*(i%3)}:{67+2*(i%3)}], {(i&3)+8*(i>>2)}, v{thr}')
            if i >= 2:
                k = i - 2; g.append(f'v_cndmask_b32 v{S+k}, v248, v{S+k}, s[{66+2*(k%3)}:{67+2*(k%3)}]')
            out.append(g)
        return out
    def rowmax(p):
        S = S_[p]
        e(f'v_max3_f32 v0, v{S}, v{S+1}, v{S+2}')
        for i in range(3, 15, 2): e(f'v_max3_f32 v0, v0, v{S+i}, v{S+i+1}')
        e(f'v_max_f32 v0, v0, v{S+15}'); e('v_mov_b32 v249, v0')
        e('v_permlane32_swap_b32 v0, v249'); e('v_max_f32 v0, v0, v249')
    def step(p, qk, sm, pv, nxt, late, masked=None, qkc=None, pre=(), prebar=(), postbar=(), check=True):
        ms = []
        for f in ORDER:
            t, i = f
            if t == 'k' and qk: ms.append((f, mfma(S_[1-p], BUF[f], Q_ + 4 * i, (qkc if qkc else NM) if i == 0 else None)))
            if t == 'v' and pv: ms.append((f, mfma(O_ + 16 * (i & 3), BUF[f], P_[1-p] + 4 * (i >> 2))))
        n = len(ms); bpos = 10 if n == 16 else 4
        vf = []
        if masked is not None: vf += mask_ops(p, masked)
        if sm: vf += softmax_fill(p)
        vf = list(pre) + vf
        nv = n - 2 if n == 16 else n - 1
        late = list(late); nxt = list(nxt); used = set(); d = []
        mine = {f for f, _ in ms}
        k = 0
        for i, (f, m) in enumerate(ms):
            e(m); used.add(f)
            if i + 1 == bpos:
                weave(em, [], list(prebar))
                em.wait_force('vmcnt(4) lgkmcnt(0)'); e('s_barrier')
                e('s_add_u32 s62, s62, 32768'); e('s_cmp_eq_u32 s62, 98304'); e('s_cselect_b32 s62, 0, s62')
                e('v_add_u32 v2, s62, v3')
                weave(em, [], list(postbar))
                d = pkg()
            if late: e(rd(late.pop(0)))
            if i + 1 >= bpos:
                for _ in range(2):
                    if nxt and (nxt[0] in used or nxt[0] not in mine): e(rd(nxt.pop(0)))
                if i + 1 > bpos and d: weave(em, [], [d.pop(0)])
            tgt = min(len(vf), (len(vf) * (i + 1) + nv - 1) // nv)
            while k < tgt: weave(em, [], [vf[k]]); k += 1
            if sm and check and i == n - 2: pass
        assert not late
        for f in nxt: e(rd(f))
        weave(em, [], d)
        em.vm = []
        if sm and check:
            fb, back = em.newlabel('fb'), em.newlabel('fbr')
            e(f'v_cmp_nle_f32 vcc, v{L_[p]}, v250'); e(f's_cbranch_vccnz {fb}')
            em.label(back)
            fallbacks.append((fb, back, p, qk))
    FULL_E, FULL_L = ORDER[:10], ORDER[10:]
    KS = [f for f in ORDER if f[0] == 'k']; VS = [f for f in ORDER if f[0] == 'v']
    e('v_mov_b32 v248, s65'); e('v_mov_b32 v250, s64')
    BLK = em.newlabel('blk'); em.align(); em.label(BLK); blk_line = len(em.lines)
    sig_blk = em.sig()
    zero = [[f'v_mov_b32 v{O_+8*i+j}, 0' for j in range(8)] for i in range(8)] + [[f'v_mov_b32 v{L_[1]}, 0', 's_lshl_b32 s48, s63, 7', 'v_add_u32 v251, s48, v6']]
    step(1, True, False, False, KS, [], qkc='0', pre=zero)
    weave(em, [], mask_ops(0, 251))
    rowmax(0)
    e(f'v_max_f32 v0, 0xc9800000, v0')
    for i in range(16): e(f'v_sub_f32 v{NM+i}, 0, v0')
    for i in range(16): e(f'v_sub_f32 v{S_[0]+i}, v{S_[0]+i}, v0')
    LAST, ODD, MASKED = em.newlabel('last'), em.newlabel('odd'), em.newlabel('msk')
    step(0, True, True, False, FULL_E, [], check=False)
    sig_even_end = em.sig(); st_even_end = em.state()
    e('s_cmp_eq_u32 s63, 0'); e(f's_cbranch_scc1 {LAST}')
    e('s_mov_b32 s42, s63')
    em.align(); em.label(ODD); odd_line = len(em.lines)
    step(1, True, True, True, FULL_E, FULL_L)
    e('s_sub_u32 s42, s42, 1'); e('s_cmp_eq_u32 s42, 0'); e(f's_cbranch_scc1 {MASKED}')
    st_odd_end = em.state()
    step(0, True, True, True, FULL_E, FULL_L)
    assert em.sig() == sig_even_end, (em.sig(), sig_even_end)
    e(f's_branch {ODD}')
    em.check_backedge(em.lines[odd_line:odd_line+30])
    em.label(MASKED); em.set_state(st_odd_end)
    step(0, True, True, True, FULL_E, FULL_L, masked=6)
    assert em.sig() == sig_even_end
    last_line = len(em.lines)
    em.label(LAST)
    lateV = [f for f in FULL_L if f[0] == 'v']
    qn = [[f'ds_read_b128 {vr(Q_+4*dg,4)}, v14 offset:{32768+dg*1024}' for dg in range(8)] + [rd(f) for f in lateV] + ['v_add_u32 v251, -64, v6']]
    step(1, False, True, True, VS, [], masked=251, pre=qn)
    sv = em.state(); em.set_state(st_even_end); em.check_backedge(em.lines[last_line:last_line+30]); em.set_state(sv)
    l = L_[1]
    pre = [[f'v_mov_b32 v249, v{l}'], [f'v_permlane32_swap_b32 v{l}, v249'], [f'v_add_f32 v253, v{l}, v249', f'v_mov_b32 v252, v{NM}'],
           ['ds_write_b64 v9, v[252:253]']]
    step(0, False, False, True, KS, [], prebar=pre, postbar=[['ds_read_b64 v[254:255], v15']])
    stamp(em, 4)
    e('v_min_f32 v0, v252, v254'); e('v_sub_f32 v252, v0, v252'); e('v_sub_f32 v254, v0, v254')
    e('v_exp_f32 v252, v252'); e('v_exp_f32 v254, v254')
    e('v_mul_f32 v253, v253, v252'); e('v_fmac_f32 v253, v255, v254'); e('v_rcp_f32 v253, v253')
    e('v_mul_f32 v252, v252, v253')
    KEEP, SEND, JOIN = em.newlabel('mg'), em.newlabel('mg'), em.newlabel('mg')
    e('s_lshl_b32 s48, s63, 2'); e('s_add_u32 s48, s48, s41'); e('s_lshl_b32 s48, s48, 18')
    e('s_lshl_b32 s49, s45, 13'); e('s_add_u32 s48, s48, s49'); e('s_lshl_b32 s49, s40, 12'); e('s_add_u32 s48, s48, s49')
    e(f's_add_u32 s48, s48, {CTXF}')
    e('s_cmp_eq_u32 s40, 0'); e(f's_cbranch_scc0 {SEND}')
    st = em.state()
    for kh in (0, 1):
        if kh == 1: em.label(SEND); em.set_state(st)
        keep, send = O_ + 32 * kh, O_ + 32 * (1 - kh)
        for i in range(8):
            for j in range(4): e(f'v_mul_f32 v{send+4*i+j}, v{send+4*i+j}, v252')
            e(f'ds_write_b128 v15, {vr(send+4*i,4)} offset:{i*1024}')
        em.wait(lg=0); e('s_barrier')
        for i in range(8): e(f'ds_read_b128 {vr(S_[0]+4*i,4)}, v9 offset:{i*1024}')
        for c in range(4):
            for j in range(8): e(f'v_fmac_f32 v{S_[0]+8*c+j}, v{keep+8*c+j}, v252')
            for j in range(4): e(f'v_cvt_pk_bf16_f32 v{P_[0]+4*c+j}, v{S_[0]+8*c+2*j}, v{S_[0]+8*c+2*j+1}')
            e(f'buffer_store_dwordx4 {vr(P_[0]+4*c,4)}, v4, s[32:35], s48 offen offset:{c*1024}')
        if kh == 0: e(f's_branch {JOIN}')
    em.label(JOIN)
    em.vm = []
    assert em.sig() == sig_blk
    e('s_mov_b32 s63, s46'); e('s_add_u32 s43, s43, 1'); e('s_cmp_lt_u32 s43, 2'); e(f's_cbranch_scc1 {BLK}')
    em.check_backedge(em.lines[blk_line:blk_line+30])
    stamp_out(em, 1, 32, 44, 5, vt=10)
    em.label(END); e('s_endpgm')
    for fb, back, p, qk in fallbacks:
        em.label(fb); em.hist = []; em.lg = []; em.vm = []
        e('s_nop 15')
        rowmax(p)
        e('v_max_f32 v0, 0, v0')
        for i in range(16): e(f'v_sub_f32 v{NM+i}, v{NM+i}, v0')
        for i in range(16): e(f'v_sub_f32 v{S_[p]+i}, v{S_[p]+i}, v0')
        if qk:
            for i in range(16): e(f'v_sub_f32 v{S_[1-p]+i}, v{S_[1-p]+i}, v0')
        e('v_sub_f32 v0, 0, v0'); e('v_exp_f32 v0, v0')
        for i in range(64): e(f'v_mul_f32 v{O_+i}, v{O_+i}, v0')
        e(f'v_mul_f32 v{L_[1-p]}, v{L_[1-p]}, v0')
        weave(em, [], softmax_fill(p))
        e('s_nop 3'); e(f's_branch {back}')
    em.end_kernel(name, 256, 256)
    em.launch(name, 256, 512, 163840)
```

```python
from em import *
from common import *
def gemm64(em, name, kidx, KG, AOFF, BOFF, final):
    e = em.e
    em.begin_kernel(name)
    END = em.newlabel('end')
    e('s_cmp_ge_u32 s2, 256'); e(f's_cbranch_scc1 {END}')
    stamp(em, 0)
    e('s_load_dwordx2 s[4:5], s[0:1], 0')
    e('s_load_dwordx2 s[6:7], s[0:1], 72')
    e('s_load_dwordx2 s[14:15], s[0:1], 88')
    e('v_and_b32 v1, 63, v0'); e('v_lshrrev_b32 v2, 6, v0'); e('v_readfirstlane_b32 s44, v2')
    e('s_and_b32 s45, s2, 7'); e('s_lshl_b32 s45, s45, 2')
    e('s_lshr_b32 s46, s2, 3'); e('s_and_b32 s47, s46, 3'); e('s_add_u32 s45, s45, s47')
    e('s_lshr_b32 s46, s46, 2')
    e('v_lshlrev_b32 v4, 4, v1')
    KW = KG // 4
    e(f's_mul_i32 s48, s46, {2*KG*1024}'); e(f's_add_u32 s48, s48, {AOFF}'); e('v_add_u32 v5, s48, v4')
    e(f'v_add_u32 v6, {KG*1024}, v5')
    e(f's_mul_i32 s48, s45, {2*KG*1024}'); e(f's_add_u32 s48, s48, {BOFF}'); e('v_add_u32 v7, s48, v4')
    e(f'v_add_u32 v8, {KG*1024}, v7')
    e(f's_mul_i32 s50, s44, {KW*1024}')
    em.wait(lg=0)
    srd(em, 32, 14, WS_SIZE); srd(em, 20, 4, 0x200000); srd(em, 24, 6, 0x200000)
    D = 8 if KW % 8 == 0 else 7
    FB, ACC = 96, 16
    def ld(k):
        sl = k % D; o = (k % 4) * 1024
        r = [f'buffer_load_dwordx4 {vr(FB+16*sl+4*i,4)}, v{5+i}, s[32:35], s50 offen offset:{o}' for i in (0, 2, 1, 3)]
        if k % 4 == 3: r.append('s_add_u32 s50, s50, 4096')
        return r
    def mm(k, z=None):
        b = FB + 16 * (k % D)
        return [mfma(ACC + 16 * (mi + 2 * qi), b + 4 * mi, b + 8 + 4 * qi, z) for qi in range(2) for mi in range(2)]
    for k in range(D): weave(em, [], ld(k))
    e('s_and_b32 s51, s44, 1'); e('s_lshr_b32 s52, s44, 1')
    e('s_lshl_b32 s53, s45, 1'); e('s_add_u32 s53, s53, s52')
    e('s_lshl_b32 s54, s46, 1'); e('s_add_u32 s54, s54, s51')
    e('v_and_b32 v9, 31, v1'); e('v_lshrrev_b32 v10, 5, v1')
    e('v_lshlrev_b32 v11, 10, v9'); e('v_lshlrev_b32 v12, 4, v10'); e('v_add_u32 v11, v11, v12')
    e('s_lshl_b32 s55, s53, 15'); e('s_lshl_b32 s56, s54, 6'); e('s_add_u32 s55, s55, s56')
    e('s_lshl_b32 s56, s53, 15'); e('s_lshl_b32 s57, s54, 11'); e('s_add_u32 s56, s56, s57'); e(f's_add_u32 s56, s56, {HF}')
    RES = 80
    def resld():
        if final:
            for c in range(2): e(f'buffer_load_dwordx4 {vr(RES+4*c,4)}, v4, s[32:35], s56 offen offset:{c*1024}')
        else:
            for c in range(2): e(f'buffer_load_dwordx4 {vr(RES+4*c,4)}, v11, s[20:23], s55 offen offset:{c*32}')
    stamp(em, 1)
    for k in range(KW):
        m = mm(k, '0' if k == 0 else None)
        l = ld(k + D) if k + D < KW else []
        e(m[0]); e(m[1]); e(m[2]); e(m[3])
        for x in l: e(x)
        if k + D == KW: resld()
    stamp(em, 2)
    e('s_lshl_b32 s48, s44, 12'); e('v_add_u32 v13, s48, v4')
    e('s_lshl_b32 s48, s44, 14'); e('v_add_u32 v14, s48, v4')
    for sub in range(4):
        for i in range(4): e(f'ds_write_b128 v13, {vr(ACC+16*sub+4*i,4)} offset:{sub*16384+i*1024}')
    em.wait(lg=0); e('s_barrier')
    for src in range(4):
        for i in range(4): e(f'ds_read_b128 {vr(FB+16*src+4*i,4)}, v14 offset:{src*4096+i*1024}')
    C = FB
    for i in range(16): e(f'v_add_f32 v{C+i}, v{C+i}, v{C+16+i}')
    for i in range(16): e(f'v_add_f32 v{C+32+i}, v{C+32+i}, v{C+48+i}')
    for i in range(16): e(f'v_add_f32 v{C+i}, v{C+i}, v{C+32+i}')
    if not final:
        for c in range(2):
            for j in range(2): e(f'v_permlane32_swap_b32 v{RES+4*c+j}, v{RES+4*c+2+j}')
    for c in range(8):
        e(f'v_lshlrev_b32 v{C+16+2*c}, 16, v{RES+c}'); e(f'v_and_b32 v{C+17+2*c}, 0xffff0000, v{RES+c}')
    for i in range(16): e(f'v_add_f32 v{C+i}, v{C+i}, v{C+16+i}')
    for c in range(8): e(f'v_cvt_pk_bf16_f32 v{RES+c}, v{C+2*c}, v{C+2*c+1}')
    if final:
        for c in range(2):
            for j in range(2): e(f'v_permlane32_swap_b32 v{RES+4*c+j}, v{RES+4*c+2+j}')
        for c in range(2): e(f'buffer_store_dwordx4 {vr(RES+4*c,4)}, v11, s[24:27], s55 offen offset:{c*32}')
    else:
        for c in range(2): e(f'buffer_store_dwordx4 {vr(RES+4*c,4)}, v4, s[32:35], s56 offen offset:{c*1024}')
        for c in range(8):
            e(f'v_lshlrev_b32 v{C+2*c}, 16, v{RES+c}'); e(f'v_and_b32 v{C+1+2*c}, 0xffff0000, v{RES+c}')
        e(f'v_add_f32 v16, v{C}, v{C+1}')
        for i in range(2, 16): e(f'v_add_f32 v16, v16, v{C+i}')
        e('v_mov_b32 v17, v16'); e('v_permlane32_swap_b32 v16, v17'); e('v_add_f32 v16, v16, v17')
        e('v_mul_f32 v18, 0x3d000000, v16')
        for i in range(16): e(f'v_sub_f32 v{C+i}, v{C+i}, v18')
        e(f'v_mul_f32 v17, v{C}, v{C}')
        for i in range(1, 16): e(f'v_fmac_f32 v17, v{C+i}, v{C+i}')
        e('v_mov_b32 v18, v17'); e('v_permlane32_swap_b32 v17, v18'); e('v_add_f32 v17, v17, v18')
        e('v_lshlrev_b32 v19, 7, v9'); e('v_lshlrev_b32 v20, 30, v10'); e('v_add_u32 v19, v19, v20')
        e('s_lshl_b32 s48, s53, 12'); e('s_lshl_b32 s49, s54, 3'); e('s_add_u32 s48, s48, s49'); e(f's_add_u32 s48, s48, {STATS}')
        e('buffer_store_dwordx2 v[16:17], v19, s[32:35], s48 offen')
    stamp_out(em, kidx, 32, 44, 3, vt=2)
    em.label(END); e('s_endpgm')
    nv = FB + 16 * D
    em.end_kernel(name, nv, nv)
    em.launch(name, 256, 256, 65536)
def gen_k3(em): gemm64(em, 'oproj_kernel', 2, 256, WOF, CTXF, False)
def gen_k5(em): gemm64(em, 'ffn2_kernel', 4, 112, W2F, AF, True)
```

```python
from em import *
from common import *
def gen_k4(em, name='ffn1_kernel'):
    e = em.e
    em.begin_kernel(name)
    END = em.newlabel('end')
    e('s_cmp_ge_u32 s2, 256'); e(f's_cbranch_scc1 {END}')
    stamp(em, 0)
    e('s_load_dwordx2 s[14:15], s[0:1], 88')
    e('v_and_b32 v1, 63, v0'); e('v_lshrrev_b32 v2, 6, v0'); e('v_readfirstlane_b32 s44, v2')
    e('s_and_b32 s45, s2, 7'); e('s_lshl_b32 s45, s45, 2')
    e('s_lshr_b32 s46, s2, 3'); e('s_and_b32 s47, s46, 3'); e('s_add_u32 s45, s45, s47')
    e('s_lshr_b32 s46, s46, 2')
    e('v_lshlrev_b32 v4, 4, v1')
    e('v_and_b32 v9, 31, v1'); e('v_lshrrev_b32 v10, 5, v1')
    e('s_lshl_b32 s48, s45, 16'); e('s_lshl_b32 s49, s44, 13'); e('s_add_u32 s48, s48, s49'); e(f's_add_u32 s48, s48, {HF}')
    e('s_lshr_b32 s50, s44, 2'); e('s_lshl_b32 s50, s50, 12'); e('s_lshl_b32 s51, s45, 13'); e('s_add_u32 s50, s50, s51'); e(f's_add_u32 s50, s50, {STATS}')
    e('v_lshlrev_b32 v5, 7, v9'); e('v_lshlrev_b32 v6, 6, v10'); e('v_add_u32 v5, v5, v6')
    e('s_min_u32 s52, s44, 6'); e('s_mul_i32 s53, s46, 7'); e('s_add_u32 s52, s52, s53')
    e('s_lshl_b32 s53, s52, 15'); e(f's_add_u32 s53, s53, {W1F}')
    em.wait(lg=0)
    srd(em, 32, 14, WS_SIZE)
    ST, H, W, ACC, BF = 16, 32, 128, 96, 64
    for i in range(4): e(f'buffer_load_dwordx4 {vr(ST+4*i,4)}, v5, s[32:35], s50 offen offset:{16*i}')
    for i in range(8):
        if i == 4: e('s_add_u32 s48, s48, 4096')
        e(f'buffer_load_dwordx4 {vr(H+4*i,4)}, v4, s[32:35], s48 offen offset:{(i%4)*1024}')
    SKIPW = em.newlabel('sk')
    e('s_cmp_eq_u32 s44, 7'); e(f's_cbranch_scc1 {SKIPW}')
    for k in range(32):
        if k % 4 == 0 and k: e('s_add_u32 s53, s53, 4096')
        e(f'buffer_load_dwordx4 {vr(W+4*k,4)}, v4, s[32:35], s53 offen offset:{(k%4)*1024}')
    J = em.newlabel('j')
    em.wait_force('vmcnt(32)')
    e(f's_branch {J}')
    em.label(SKIPW)
    em.raw('s_waitcnt vmcnt(0)')
    em.label(J)
    stamp(em, 1)
    e(f'v_add_f32 v6, v{ST}, v{ST+2}')
    for b in range(2, 8): e(f'v_add_f32 v6, v6, v{ST+2*b}')
    e('v_mov_b32 v7, v6'); e('v_permlane32_swap_b32 v6, v7'); e('v_add_f32 v6, v6, v7')
    e('v_mul_f32 v6, 0x3b000000, v6')
    e(f'v_add_f32 v7, v{ST+1}, v{ST+3}')
    for b in range(2, 8): e(f'v_add_f32 v7, v7, v{ST+2*b+1}')
    e('v_mov_b32 v11, 0')
    e('s_mov_b32 s54, 0x3d000000')
    for b in range(8):
        e(f'v_fma_f32 v{ST+2*b}, v{ST+2*b}, s54, -v6'); e(f'v_fmac_f32 v11, v{ST+2*b}, v{ST+2*b}')
    e('v_fmac_f32 v7, 0x42000000, v11')
    e('v_mov_b32 v8, v7'); e('v_permlane32_swap_b32 v7, v8'); e('v_add_f32 v7, v7, v8')
    e('v_mov_b32 v8, 0x3727c5ac'); e('v_fmac_f32 v8, 0x3b000000, v7'); e('v_rsq_f32 v8, v8')
    e('v_mul_f32 v6, v6, v8')
    e('s_lshl_b32 s48, s44, 13'); e('v_add_u32 v12, s48, v4')
    for i in range(8):
        for j in range(4):
            r = H + 4 * i + j; t = ST + 2 * (j & 1)
            e(f'v_lshlrev_b32 v{t}, 16, v{r}'); e(f'v_and_b32 v{t+1}, 0xffff0000, v{r}')
            e(f'v_fma_f32 v{t}, v{t}, v8, -v6'); e(f'v_fma_f32 v{t+1}, v{t+1}, v8, -v6')
            e(f'v_cvt_pk_bf16_f32 v{r}, v{t}, v{t+1}')
        e(f'ds_write_b128 v12, {vr(H+4*i,4)} offset:{i*1024}')
    em.wait(lg=0); e('s_barrier')
    stamp(em, 2)
    e('s_cmp_eq_u32 s44, 7'); e(f's_cbranch_scc1 {END if not PROF else "k4_prof"}')
    NB = 8
    def rd(n):
        k, qi = n >> 1, n & 1
        return f'ds_read_b128 {vr(BF+4*(n%NB),4)}, v4 offset:{qi*32768+k*1024}'
    for n in range(NB - 1): e(rd(n))
    for n in range(64):
        k, qi = n >> 1, n & 1
        if n + NB - 1 < 64: e(rd(n + NB - 1))
        e(mfma(ACC + 16 * qi, W + 4 * k, BF + 4 * (n % NB), '0' if k == 0 else None))
    stamp(em, 3)
    e(f's_mul_i32 s48, s45, {2*112*1024}'); e('s_lshl_b32 s49, s52, 11'); e('s_add_u32 s48, s48, s49'); e(f's_add_u32 s48, s48, {AF}')
    for qi in range(2):
        for c in range(2):
            a = ACC + 16 * qi + 8 * c; d = H + 8 * qi + 4 * c
            for j in range(8): e(f'v_max_f32 v{a+j}, 0, v{a+j}')
            for j in range(4): e(f'v_cvt_pk_bf16_f32 v{d+j}, v{a+2*j}, v{a+2*j+1}')
            e(f'buffer_store_dwordx4 {vr(d,4)}, v4, s[32:35], s48 offen offset:{c*1024}')
        if qi == 0: e(f's_add_u32 s48, s48, {112*1024}')
    if PROF: em.label('k4_prof')
    stamp_out(em, 3, 32, 44, 4, vt=2)
    em.label(END); e('s_endpgm')
    em.end_kernel(name, 256, 256)
    em.launch(name, 256, 512, 65536)
```

```python
import sys
from em import Em
from k1 import gen_k1
NAME = "sequential_preLN__compressed_kv_cla__dense_activation_relu__prompt"
hdr = open(f'cdna_kernels/{NAME}.s.ref').read().split('; Override launch')[0]
em = Em()
which = sys.argv[2] if len(sys.argv) > 2 else '12345'
if '1' in which: gen_k1(em)
if '2' in which:
    from k2 import gen_k2; gen_k2(em)
if '3' in which:
    from k3 import gen_k3; gen_k3(em)
if '4' in which:
    from k4 import gen_k4; gen_k4(em)
if '5' in which:
    from k3 import gen_k5; gen_k5(em)
open(sys.argv[1], 'w').write(em.text(hdr))
print('instr', em.ninstr, 'nops', em.nnop)
```

```python
from em import *
from common import *
ROT = int(os.environ.get('ROT','0')); SC1 = ' sc1' if int(os.environ.get('SC1','0')) else ''
def gen_k1(em, name='kv_kernel'):
    e = em.e
    em.begin_kernel(name)
    END = em.newlabel('k1end')
    e('s_cmp_ge_u32 s2, 256'); e(f's_cbranch_scc1 {END}')
    stamp(em, 0)
    e('s_load_dwordx4 s[4:7], s[0:1], 0')
    e('s_load_dwordx4 s[8:11], s[0:1], 24')
    e('s_load_dwordx2 s[12:13], s[0:1], 40')
    e('s_load_dwordx4 s[16:19], s[0:1], 56')
    e('s_load_dwordx2 s[14:15], s[0:1], 88')
    e('v_and_b32 v1, 63, v0')
    e('v_lshrrev_b32 v2, 6, v0')
    e('v_readfirstlane_b32 s44, v2')
    e('s_and_b32 s45, s2, 7'); e('s_lshl_b32 s45, s45, 2')
    e('s_lshr_b32 s46, s2, 3'); e('s_and_b32 s47, s46, 3'); e('s_add_u32 s45, s45, s47')
    e('s_lshr_b32 s46, s46, 2')
    e('v_lshrrev_b32 v3, 4, v1')
    e('v_and_b32 v4, 3, v1')
    e('v_lshrrev_b32 v5, 2, v1')
    e('v_and_b32 v6, 3, v5')
    e('v_xor_b32 v7, v4, v3'); e('v_lshlrev_b32 v7, 4, v7')
    e('v_lshlrev_b32 v10, 10, v5'); e('v_add_u32 v10, v10, v7')
    e('s_lshl_b32 s48, s46, 18'); e('s_lshl_b32 s49, s44, 15'); e('s_add_u32 s48, s48, s49')
    e('v_add_u32 v10, s48, v10')
    e('v_xor_b32 v8, v6, v3'); e('v_lshlrev_b32 v8, 6, v8'); e('v_lshlrev_b32 v9, 4, v4'); e('v_add_u32 v8, v8, v9')
    e('v_lshlrev_b32 v11, 13, v3'); e('v_add_u32 v11, v11, v8')
    e('s_lshl_b32 s48, s44, 15'); e('s_lshl_b32 s49, s45, 8'); e('s_add_u32 s48, s48, s49')
    e('v_add_u32 v11, s48, v11')
    em.wait(lg=0)
    stamp(em, 1)
    srd(em, 20, 6, 0x200000); srd(em, 24, 8, 0x400000); srd(em, 28, 10, 0x400000)
    srd(em, 32, 14, WS_SIZE); srd(em, 40, 4, 0x200000)
    e('s_lshl_b32 s50, s2, 3'); e('s_add_u32 s50, s50, s44')
    e('s_lshl_b32 s48, s50, 10')
    e('v_lshlrev_b32 v12, 4, v1')
    e('buffer_load_dwordx4 v[200:203], v12, s[40:43], s48 offen')
    e('s_min_u32 s55, s50, 1919')
    L1, L2, LJ = em.newlabel('t'), em.newlabel('t'), em.newlabel('t')
    e('s_cmp_ge_u32 s55, 1024'); e(f's_cbranch_scc1 {L1}')
    st = em.state()
    srd(em, 36, 12, 0x400000); e('s_mov_b32 s51, 1024')
    e('s_lshr_b32 s56, s55, 2'); e('s_and_b32 s57, s55, 3')
    e(f's_mov_b32 s53, {WOF}'); e(f's_mov_b32 s54, {256*1024}'); e(f's_branch {LJ}')
    em.label(L1); em.set_state(st)
    e('s_cmp_ge_u32 s55, 1472'); e(f's_cbranch_scc1 {L2}')
    srd(em, 36, 16, 512*3584); e('s_mov_b32 s51, 3584')
    e('s_sub_u32 s55, s55, 1024'); e('s_mul_i32 s56, s55, 4682'); e('s_lshr_b32 s56, s56, 16')
    e('s_mul_i32 s57, s56, 14'); e('s_sub_u32 s57, s55, s57')
    e(f's_mov_b32 s53, {W1F}'); e(f's_mov_b32 s54, {32*1024}'); e(f's_branch {LJ}')
    em.label(L2); em.set_state(st)
    srd(em, 36, 18, 1792*1024); e('s_mov_b32 s51, 1024')
    e('s_sub_u32 s55, s55, 1472'); e('s_lshr_b32 s56, s55, 2'); e('s_and_b32 s57, s55, 3')
    e(f's_mov_b32 s53, {W2F}'); e(f's_mov_b32 s54, {112*1024}')
    em.label(LJ)
    e('s_mul_i32 s52, s56, s51'); e('s_lshl_b32 s52, s52, 4'); e('s_lshl_b32 s58, s57, 8'); e('s_add_u32 s52, s52, s58')
    e('s_lshl_b32 s58, s57, 2'); e('s_mul_i32 s58, s58, s54'); e('s_add_u32 s53, s53, s58')
    e('s_lshl_b32 s58, s56, 10'); e('s_add_u32 s53, s53, s58')
    e('v_mul_lo_u32 v13, v3, s51'); e('v_add_u32 v13, v13, v8')
    e('s_lshl_b32 s59, s44, 12'); e('s_add_u32 s59, s59, 131072')
    e('s_lshl_b32 s58, s51, 2')
    for i in range(4):
        e(f's_add_u32 m0, s59, {i*1024}')
        e('buffer_load_dwordx4 v13, s[36:39], s52 offen lds', tag='tr')
        if i < 3: e('s_add_u32 s52, s52, s58')
    e('s_lshl_b32 s60, s44, 11')
    e('s_lshl_b32 s61, s44, 10')
    e('s_lshl_b32 s70, s47, 2'); e('s_lshl_b32 s71, s46, 1'); e('s_add_u32 s70, s70, s71')
    if not ROT: e('s_mov_b32 s70, 0')
    def dma(c):
        sl = (c & 3) * 32768
        return [[f's_add_u32 s71, s70, {c}', 's_and_b32 s71, s71, 15', f's_add_u32 m0, s60, {sl}', f's_lshl_b32 s62, s71, 6', (f'buffer_load_dwordx4 v10, s[20:23], s62 offen lds', f'c{c}')],
                [f's_add_u32 m0, s60, {sl+1024}', f's_add_u32 s62, s62, 16384', (f'buffer_load_dwordx4 v10, s[20:23], s62 offen lds', f'c{c}')],
                [f's_add_u32 m0, s61, {sl+16384}', f's_lshl_b32 s62, s71, 18', (f'buffer_load_dwordx4 v11, s[24:27], s62 offen lds', f'c{c}')],
                [f's_add_u32 m0, s61, {sl+24576}', (f'buffer_load_dwordx4 v11, s[28:31], s62 offen lds', f'c{c}')]]
    for c in range(4): weave(em, [], dma(c))
    stamp(em, 2)
    e('v_and_b32 v18, 31, v1'); e('v_lshrrev_b32 v19, 5, v1')
    e('v_xor_b32 v14, v19, v6'); e('v_lshlrev_b32 v14, 4, v14')
    e('v_lshlrev_b32 v20, 6, v18'); e('v_add_u32 v14, v14, v20')
    e('s_and_b32 s48, s44, 3'); e('s_lshl_b32 s48, s48, 12')
    e('v_add_u32 v14, s48, v14')
    e('v_xor_b32 v15, 32, v14')
    e('v_add_u32 v16, 0x10000, v14'); e('v_add_u32 v17, 0x10000, v15')
    e('v_and_b32 v28, 1, v3'); e('v_lshlrev_b32 v28, 5, v28'); e('v_lshlrev_b32 v29, 3, v4'); e('v_add_u32 v28, v28, v29')
    e('v_lshlrev_b32 v29, 8, v6'); e('v_add_u32 v28, v28, v29')
    e('v_lshlrev_b32 v29, 11, v19'); e('v_add_u32 v30, v28, v29')
    e('v_lshlrev_b32 v29, 10, v19'); e('v_add_u32 v31, v28, v29')
    e('s_lshr_b32 s48, s44, 2'); e('s_lshl_b32 s48, s48, 13'); e('s_add_u32 s48, s48, 16384')
    for db in range(4):
        e(f'v_xor_b32 v29, {db}, v6'); e('v_lshlrev_b32 v29, 6, v29')
        e(f'v_add3_u32 v{20+db}, v30, v29, s48')
        e(f'v_add_u32 v{24+db}, 0x10000, v{20+db}')
        e(f'v_add3_u32 v{204+db}, v31, v29, s59')
    for j in range(4):
        e(f'v_lshlrev_b32 v{208+2*j}, 16, v{200+j}'); e(f'v_and_b32 v{209+2*j}, 0xffff0000, v{200+j}')
    stamp(em, 3)
    def allsum(v):
        row16_sum(em, v)
        for k in range(4): e(f'v_readlane_b32 s{64+k}, v{v}, {16*k}')
        e(f'v_mov_b32 v{v}, s64'); e(f'v_add_f32 v{v}, s65, v{v}'); e(f'v_add_f32 v{v}, s66, v{v}'); e(f'v_add_f32 v{v}, s67, v{v}')
    e('v_add_f32 v216, v208, v209')
    for j in range(2, 8): e(f'v_add_f32 v216, v216, v{208+j}')
    allsum(216)
    e('v_mul_f32 v216, 0x3b000000, v216')
    for j in range(8): e(f'v_sub_f32 v{208+j}, v{208+j}, v216')
    e('v_mul_f32 v217, v208, v208')
    for j in range(1, 8): e(f'v_fmac_f32 v217, v{208+j}, v{208+j}')
    allsum(217)
    e('v_mov_b32 v218, 0x3727c5ac')
    e('v_fmac_f32 v218, 0x3b000000, v217')
    e('v_rsq_f32 v218, v218')
    for j in range(8): e(f'v_mul_f32 v{208+j}, v{208+j}, v218')
    for j in range(4): e(f'v_cvt_pk_bf16_f32 v{200+j}, v{208+2*j}, v{209+2*j}')
    e('v_lshrrev_b32 v216, 1, v1'); e('v_lshlrev_b32 v216, 10, v216')
    e('v_and_b32 v217, 1, v1'); e('v_lshlrev_b32 v217, 9, v217'); e('v_add_u32 v216, v216, v217')
    e('s_lshr_b32 s48, s50, 5'); e('s_lshl_b32 s48, s48, 15'); e('s_and_b32 s49, s50, 31'); e('s_lshl_b32 s49, s49, 4')
    e('s_add_u32 s48, s48, s49'); e(f's_add_u32 s48, s48, {XNF}')
    e('buffer_store_dwordx4 v[200:203], v216, s[32:35], s48 offen')
    em.wait_tag('tr')
    stamp(em, 4)
    for db in range(4):
        e(f'ds_read_b64_tr_b16 v[{220+4*db}:{221+4*db}], v{204+db}')
        e(f'ds_read_b64_tr_b16 v[{222+4*db}:{223+4*db}], v{204+db} offset:2048')
    for db in range(4):
        e(f'buffer_store_dwordx4 v[{220+4*db}:{223+4*db}], v12, s[32:35], s53 offen')
        if db < 3: e('s_add_u32 s53, s53, s54')
    ACC = 128
    def acc(db, t): return ACC + 16 * (db * 2 + t)
    FC = [32, 56]; FW = [40, 64]
    def reads(c, ks):
        sl = (c & 3) * 32768; hi = sl >= 65536; o = sl & 0xffff
        ca = (16 if hi else 14) + ks; wa = 24 if hi else 20
        r = []
        r.append(f'ds_read_b128 {vr(FC[ks],4)}, v{ca} offset:{o}')
        for db in range(4):
            r.append(f'ds_read_b64_tr_b16 {vr(FW[ks]+4*db,2)}, v{wa+db} offset:{o+ks*4096}')
            r.append(f'ds_read_b64_tr_b16 {vr(FW[ks]+4*db+2,2)}, v{wa+db} offset:{o+ks*4096+1024}')
            if db == 0: r.append(f'ds_read_b128 {vr(FC[ks]+4,4)}, v{ca} offset:{o+2048}')
        return r
    em.wait_tag('c0')
    stamp(em, 5)
    e('s_barrier')
    weave(em, [], reads(0, 0))
    LV = em.newlabel('k1v')
    e('s_cmp_ge_u32 s44, 4'); e(f's_cbranch_scc1 {LV}')
    st = em.state()
    for role in (0, 1):
        if role == 1: em.label(LV); em.set_state(st)
        def mf(c, ks):
            out = []
            for db in range(4):
                for t in range(2):
                    w, cf = FW[ks] + 4 * db, FC[ks] + 4 * t
                    z = '0' if (c == 0 and ks == 0) else None
                    out.append(mfma(acc(db, t), w, cf, z) if role == 0 else mfma(acc(db, t), cf, w, z))
            return out
        for c in range(16):
            weave(em, mf(c, 0), reads(c, 1), per=2)
            m = mf(c, 1)
            if c < 15:
                em.wait(lg=0)
                e(m[0]); e(m[1])
                em.wait_tag(f'c{c+1}'); e('s_barrier')
                fill = reads(c + 1, 0)
                if c + 4 < 16:
                    d = dma(c + 4); fill = fill[:6] + [d[0]] + fill[6:8] + [d[1]] + fill[8:] + d[2:]
                weave(em, [None] + m[2:], fill)
            else:
                weave(em, m, [])
        stamp(em, 6)
        if role == 0:
            e('s_lshl_b32 s48, s45, 6'); e('s_lshl_b32 s49, s46, 3'); e('s_add_u32 s48, s48, s49')
            e('s_lshl_b32 s49, s44, 1'); e('s_add_u32 s48, s48, s49'); e('s_lshl_b32 s48, s48, 13')
            if KF: e(f's_add_u32 s48, s48, {KF}')
        else:
            e('s_lshl_b32 s48, s45, 6'); e('s_lshl_b32 s49, s46, 3'); e('s_add_u32 s48, s48, s49')
            e('s_and_b32 s49, s44, 3'); e('s_lshl_b32 s49, s49, 1'); e('s_add_u32 s48, s48, s49'); e('s_lshl_b32 s48, s48, 13')
            e(f's_add_u32 s48, s48, {VF}')
        k = 0
        for db in range(4):
            for t in range(2):
                for hf in range(2):
                    a = acc(db, t) + 8 * hf; d = 32 + 4 * (k % 8); k += 1
                    for j in range(4): e(f'v_cvt_pk_bf16_f32 v{d+j}, v{a+2*j}, v{a+2*j+1}')
                    off = (t * 8 + 2 * db + hf) * 1024 if role == 0 else ((t * 2 + hf) * 4 + db) * 1024
                    e(f's_add_u32 s49, s48, {off}')
                    e(f'buffer_store_dwordx4 {vr(d,4)}, v12, s[32:35], s49 offen{SC1}')
        stamp_out(em, 0, 32, 44, 7)
        e('s_endpgm')
    em.label(END); e('s_endpgm')
    em.end_kernel(name, 256, 256)
    em.launch(name, 256, 512, 163840)
```

```python
from em import *
from common import *
import struct
def f2u(x): return struct.unpack('<I', struct.pack('<f', x))[0]
QSCALE = f2u(128 ** -0.5 * 1.4426950408889634)
Q_, O_, S_, P_, NM, FB = 16, 48, [112, 128], [144, 152], 160, 176
L_ = [7, 8]; T_ = [10, 11, 12, 13]
XB = 98304
OOB = 0x40000000
EXP = int(os.environ.get('EXP', '0'))
ONEBLK = int(os.environ.get('ONEBLK', '0'))
ORDER = [('k',0),('v',0),('k',1),('k',2),('v',1),('k',3),('k',4),('v',2),('k',5),('k',6),('v',3),('k',7),('v',4),('v',5),('v',6),('v',7)]
BUF = {f: FB + 4 * i for i, f in enumerate(ORDER)}
def gen_k2(em, name='attn_kernel'):
    e = em.e
    em.begin_kernel(name)
    END = em.newlabel('k2end')
    e('s_cmp_ge_u32 s2, 256'); e(f's_cbranch_scc1 {END}')
    stamp(em, 0)
    e('s_load_dwordx2 s[4:5], s[0:1], 16')
    e('s_load_dwordx2 s[14:15], s[0:1], 88')
    e('v_and_b32 v1, 63, v0'); e('v_lshrrev_b32 v2, 6, v0'); e('v_readfirstlane_b32 s44, v2')
    e('s_and_b32 s45, s2, 7'); e('s_lshl_b32 s45, s45, 2')
    e('s_lshr_b32 s46, s2, 3'); e('s_and_b32 s47, s46, 3'); e('s_add_u32 s45, s45, s47')
    e('s_lshr_b32 s46, s46, 2')
    e('s_sub_u32 s47, 15, s46')
    e('s_lshr_b32 s40, s44, 2'); e('s_and_b32 s41, s44, 3')
    e('v_lshlrev_b32 v4, 4, v1')
    e('s_lshl_b32 s60, s44, 11')
    e('v_add_u32 v5, s60, v4')
    e('s_lshl_b32 s48, s40, 13'); e('v_add_u32 v3, s48, v4')
    e('v_lshrrev_b32 v10, 4, v1'); e('v_and_b32 v11, 3, v1'); e('v_lshrrev_b32 v12, 2, v1'); e('v_and_b32 v12, 3, v12')
    e('v_xor_b32 v13, v12, v10'); e('v_lshlrev_b32 v13, 6, v13'); e('v_lshlrev_b32 v14, 4, v11'); e('v_add_u32 v13, v13, v14')
    e('v_lshlrev_b32 v9, 13, v10'); e('v_add_u32 v9, v9, v13')
    e('s_lshl_b32 s48, s44, 17'); e('s_lshl_b32 s49, s45, 8'); e('s_add_u32 s48, s48, s49')
    e('v_add_u32 v9, s48, v9')
    e('v_lshrrev_b32 v15, 5, v1')
    e('v_and_b32 v14, 1, v10'); e('v_lshlrev_b32 v14, 5, v14'); e('v_lshlrev_b32 v13, 3, v11'); e('v_add_u32 v14, v14, v13')
    e('v_lshlrev_b32 v13, 8, v12'); e('v_add_u32 v14, v14, v13'); e('v_lshlrev_b32 v13, 11, v15'); e('v_add_u32 v14, v14, v13')
    e('v_add_u32 v14, 0x8000, v14')
    for db in range(4):
        e(f'v_xor_b32 v13, {db}, v12'); e('v_lshlrev_b32 v13, 6, v13')
        e(f'v_add_u32 v{240+db}, v14, v13'); e(f'v_add_u32 v{244+db}, 0x10000, v{240+db}')
    e('s_sub_u32 s48, s41, s40'); e('s_lshl_b32 s48, s48, 5')
    e('v_and_b32 v6, 31, v1'); e('v_lshlrev_b32 v13, 2, v15'); e('v_sub_u32 v6, v6, v13'); e('v_add_u32 v6, s48, v6')
    em.wait(lg=0)
    srd(em, 20, 4, 0x400000); srd(em, 32, 14, WS_SIZE)
    e('s_mov_b32 s50, 0'); e('s_lshl_b32 s51, s47, 1'); e('s_add_u32 s51, s51, 2')
    e('s_lshl_b32 s52, s46, 1'); e('s_add_u32 s52, s52, 2'); e('s_mov_b32 s53, s60')
    e('s_lshl_b32 s54, s45, 19'); e(f's_add_u32 s55, s54, {VF - 32768}')
    if KF: e(f's_add_u32 s54, s54, {KF}')
    e(f's_mov_b32 s58, {OOB}'); e(f's_add_u32 s59, s60, 98304')
    def pkg():
        return [['s_lshl_b32 s56, s50, 14', 's_add_u32 s57, s56, s55', 's_add_u32 s56, s56, s54',
                 's_cmp_lt_u32 s50, s51', 's_cselect_b32 s56, s56, s58', 's_mov_b32 m0, s53', 's_cmp_ge_u32 s50, 2',
                 ('buffer_load_dwordx4 v5, s[32:35], s56 offen lds', 'pk')],
                [('buffer_load_dwordx4 v5, s[32:35], s56 offen offset:1024 lds', 'pk'),
                 's_cselect_b32 s57, s57, s58', 's_add_u32 m0, s53, 16384', 's_add_u32 s50, s50, 1'],
                [('buffer_load_dwordx4 v5, s[32:35], s57 offen lds', 'pk'),
                 's_add_u32 s56, s51, 2', 's_cmp_eq_u32 s50, s56', 's_cselect_b32 s50, 0, s50', 's_cselect_b32 s51, s52, s51', 's_cselect_b32 s52, 0, s52'],
                [('buffer_load_dwordx4 v5, s[32:35], s57 offen offset:1024 lds', 'pk'),
                 's_add_u32 s53, s53, 32768', 's_cmp_eq_u32 s53, s59', 's_cselect_b32 s53, s60, s53']]
    e('s_cmp_eq_u32 s40, 0'); e('s_cselect_b32 s48, s47, s46'); e('s_lshl_b32 s48, s48, 2'); e('s_add_u32 s48, s48, s41')
    e('s_lshl_b32 s48, s48, 15'); e(f's_add_u32 s48, s48, {XNF}')
    e('s_lshl_b32 s61, s44, 12'); e('s_add_u32 s61, s61, 32768')
    XF = 112
    for q in range(4):
        for i in range(4):
            e(f's_add_u32 m0, s61, {q*32768 + i*1024}'); e(f's_mov_b32 s49, {(q*128 + i*4)*8192}')
            e('buffer_load_dwordx4 v9, s[20:23], s49 offen lds', tag=f'wq{q}')
        for k in range(8 * q, 8 * q + 8):
            if k % 4 == 0 and k: e('s_add_u32 s48, s48, 4096')
            e(f'buffer_load_dwordx4 {vr(XF+4*k,4)}, v4, s[32:35], s48 offen offset:{(k%4)*1024}')
        if q == 0: weave(em, [], pkg())
    stamp(em, 1)
    WF = [16, 32]
    def wreads(k):
        o = k * 4096; a = 244 if o >= 65536 else 240; o &= 0xffff
        r = []
        for db in range(4):
            r.append(f'ds_read_b64_tr_b16 {vr(WF[k&1]+4*db,2)}, v{a+db} offset:{o}')
            r.append(f'ds_read_b64_tr_b16 {vr(WF[k&1]+4*db+2,2)}, v{a+db} offset:{o+1024}')
        return r
    em.wait_tag('wq0'); e('s_barrier')
    stamp(em, 2)
    weave(em, [], wreads(0))
    for k in range(32):
        m = [mfma(O_ + 16 * db, WF[k&1] + 4 * db, XF + 4 * k, '0' if k == 0 else None) for db in range(4)]
        if k % 8 == 7 and k < 31:
            em.wait(lg=0); e(m[0])
            em.wait_tag(f'wq{k//8+1}'); e('s_barrier')
            fill = wreads(k + 1)
            if k in (7, 15): fill = fill + pkg()
            weave(em, [None] + m[1:], fill)
        elif k < 31: weave(em, m, wreads(k + 1))
        else: weave(em, m, [])
    e('s_barrier')
    e(f's_mov_b32 s48, {QSCALE}')
    e('s_lshl_b32 s49, s44, 13'); e(f's_add_u32 s49, s49, {XB}'); e('v_add_u32 v9, s49, v4')
    for dg in range(8):
        a = O_ + 8 * dg; d = XF + 4 * dg
        for j in range(8): e(f'v_mul_f32 v{a+j}, s48, v{a+j}')
        for j in range(4): e(f'v_cvt_pk_bf16_f32 v{d+j}, v{a+2*j}, v{a+2*j+1}')
        e(f'ds_write_b128 v9, {vr(d,4)} offset:{dg*1024}')
    e('s_xor_b32 s49, s44, 4'); e('s_lshl_b32 s49, s49, 13'); e(f's_add_u32 s49, s49, {XB}'); e('v_add_u32 v15, s49, v4')
    e('s_lshl_b32 s49, s41, 13'); e(f's_add_u32 s49, s49, {XB}'); e('v_add_u32 v14, s49, v4')
    e('s_mov_b32 s62, 0')
    e('v_mov_b32 v2, v3')
    e('s_mov_b32 s63, s47'); e('s_mov_b32 s43, 0')
    e(f's_mov_b32 s64, {f2u(2.0**60)}'); e('s_mov_b32 s65, 0xff800000')
    em.wait_force('vmcnt(8) lgkmcnt(0)'); e('s_barrier')
    stamp(em, 3)
    attn_main(em, pkg, END, 1)
    em.end_kernel(name, 256, 256)
    em.launch(name, 256, 512, 163840)
CSC = ' sc1' if int(os.environ.get('CSC', '0')) else ''
def attn_main(em, pkg, END, kidx, hook_last=None, hook_end=None):
    e = em.e
    def rd(f):
        t, i = f
        off = i * 1024 if t == 'k' else 16384 + i * 1024
        return f'ds_read_b128 {vr(BUF[f],4)}, v2 offset:{off}'
    for dg in range(8): e(f'ds_read_b128 {vr(Q_+4*dg,4)}, v14 offset:{dg*1024}')
    for i in range(8): e(rd(('k', i)))
    em.wait(lg=0); em.vm = []
    fallbacks = []
    def softmax_fill(p, masked_thr=None):
        S, P = S_[p], P_[p]; out = []
        for i in range(17):
            g = []
            if i < 16: g.append(f'v_exp_f32 v{T_[i%4]}, v{S+i}' if not EXP & 8 else f'v_mov_b32 v{T_[i%4]}, v{S+i}')
            if i >= 1:
                k = i - 1
                g.append(f'v_add_f32 v{L_[p]}, v{L_[1-p] if k == 0 else L_[p]}, v{T_[k%4]}')
                if k & 1: g.append(f'v_cvt_pk_bf16_f32 v{P+k//2}, v{T_[(k-1)%4]}, v{T_[k%4]}')
            out.append(g)
        return out
    def mask_ops(p, thr):
        S = S_[p]; out = []
        for i in range(18):
            g = []
            if i < 16: g.append(f'v_cmp_le_i32 s[{66+2*(i%3)}:{67+2*(i%3)}], {(i&3)+8*(i>>2)}, v{thr}')
            if i >= 2:
                k = i - 2; g.append(f'v_cndmask_b32 v{S+k}, v248, v{S+k}, s[{66+2*(k%3)}:{67+2*(k%3)}]')
            out.append(g)
        return out
    def rowmax(p):
        S = S_[p]
        e(f'v_max3_f32 v0, v{S}, v{S+1}, v{S+2}')
        for i in range(3, 15, 2): e(f'v_max3_f32 v0, v0, v{S+i}, v{S+i+1}')
        e(f'v_max_f32 v0, v0, v{S+15}'); e('v_mov_b32 v249, v0')
        e('v_permlane32_swap_b32 v0, v249'); e('v_max_f32 v0, v0, v249')
    def step(p, qk, sm, pv, nxt, late, masked=None, qkc=None, pre=(), prebar=(), postbar=(), check=True, post=None):
        ms = []
        for f in ORDER:
            t, i = f
            if EXP & 16:
                def m16(d, a, b, c=None):
                    cs = vr(d, 4) if c is None else (c if isinstance(c, str) else vr(c, 4))
                    return f'v_mfma_f32_16x16x32_bf16 {vr(d,4)}, {vr(a,4)}, {vr(b,4)}, {cs}'
                if t == 'k' and qk: ms.append((f, [m16(S_[1-p] + 4 * (2 * (i >> 2) + b), BUF[f], Q_ + 4 * (4 * b + (i & 3)), (qkc if qkc else NM + 4 * b) if (i & 3) == 0 else None) for b in range(2)]))
                if t == 'v' and pv: ms.append((f, [m16(O_ + 8 * i + 4 * b, BUF[f], P_[1-p] + 4 * b) for b in range(2)]))
                continue
            if t == 'k' and qk: ms.append((f, mfma(S_[1-p], BUF[f], Q_ + 4 * i, (qkc if qkc else NM) if i == 0 else None)))
            if t == 'v' and pv: ms.append((f, mfma(O_ + 16 * (i & 3), BUF[f], P_[1-p] + 4 * (i >> 2))))
        n = len(ms); bpos = 10 if n == 16 else 4
        vf = []
        if masked is not None: vf += mask_ops(p, masked)
        if sm: vf += softmax_fill(p)
        vf = list(pre) + vf
        nv = n - 2 if n == 16 else n - 1
        late = list(late); nxt = list(nxt); used = set(); d = []
        mine = {f for f, _ in ms}
        k = 0
        for i, (f, m) in enumerate(ms):
            m2 = None
            if isinstance(m, list):
                m, m2 = m
                if EXP & 32 and i + 1 != bpos:
                    e(m); m = m2; m2 = None
                    tgt = min(len(vf), (len(vf) * (i + 1) + nv - 1) // nv)
                    if k < tgt and len(vf[k]) > 1: e(vf[k][0]); vf[k] = vf[k][1:]
            e(m); used.add(f)
            if m2: e(m2)
            if i + 1 == bpos:
                weave(em, [], list(prebar))
                em.wait_force('vmcnt(4) lgkmcnt(0)')
                if not (EXP & 1 and n == 16): e('s_barrier')
                e('s_add_u32 s62, s62, 32768'); e('s_cmp_eq_u32 s62, 98304'); e('s_cselect_b32 s62, 0, s62')
                e('v_add_u32 v2, s62, v3')
                weave(em, [], list(postbar))
                d = pkg()
                if EXP & 4 and n == 16: d = [[x for x in g if not isinstance(x, tuple)] for g in d]
            if late: e(rd(late.pop(0)))
            if i + 1 >= bpos:
                for _ in range(2):
                    if nxt and (nxt[0] in used or nxt[0] not in mine): e(rd(nxt.pop(0)))
                if i + 1 > bpos and d: weave(em, [], [d.pop(0)])
            tgt = min(len(vf), (len(vf) * (i + 1) + nv - 1) // nv)
            while k < tgt: weave(em, [], [vf[k]]); k += 1
            if sm and check and i == n - 2: pass
        assert not late
        for f in nxt: e(rd(f))
        weave(em, [], d)
        if post: post()
        em.vm = []
        if sm and check:
            fb, back = em.newlabel('fb'), em.newlabel('fbr')
            e(f'v_cmp_nle_f32 vcc, v{L_[p]}, v250'); e(f's_cbranch_vccnz {fb}')
            em.label(back)
            fallbacks.append((fb, back, p, qk))
    FULL_E, FULL_L = ORDER[:10], ORDER[10:]
    KS = [f for f in ORDER if f[0] == 'k']; VS = [f for f in ORDER if f[0] == 'v']
    e('v_mov_b32 v248, s65'); e('v_mov_b32 v250, s64')
    if EXP & 2:
        PL = em.newlabel('pr'); e('s_cmp_eq_u32 s40, 0'); e(f's_cbranch_scc1 {PL}'); e('s_setprio 1'); em.label(PL)
    BLK = em.newlabel('blk'); em.align(); em.label(BLK); blk_line = len(em.lines)
    sig_blk = em.sig()
    zero = [[f'v_mov_b32 v{O_+8*i+j}, 0' for j in range(8)] for i in range(8)] + [[f'v_mov_b32 v{L_[1]}, 0', 's_lshl_b32 s48, s63, 7', 'v_add_u32 v251, s48, v6']]
    step(1, True, False, False, KS, [], qkc='0', pre=zero)
    weave(em, [], mask_ops(0, 251))
    rowmax(0)
    e(f'v_max_f32 v0, 0xc9800000, v0')
    for i in range(16): e(f'v_sub_f32 v{NM+i}, 0, v0')
    for i in range(16): e(f'v_sub_f32 v{S_[0]+i}, v{S_[0]+i}, v0')
    LAST, ODD, MASKED = em.newlabel('last'), em.newlabel('odd'), em.newlabel('msk')
    step(0, True, True, False, FULL_E, [], check=False)
    sig_even_end = em.sig(); st_even_end = em.state()
    e('s_cmp_eq_u32 s63, 0'); e(f's_cbranch_scc1 {LAST}')
    e('s_mov_b32 s42, s63')
    if ONEBLK: stamp(em, 5)
    sig_even_end = em.sig()
    em.align(); em.label(ODD); odd_line = len(em.lines)
    step(1, True, True, True, FULL_E, FULL_L)
    e('s_sub_u32 s42, s42, 1'); e('s_cmp_eq_u32 s42, 0'); e(f's_cbranch_scc1 {MASKED}')
    st_odd_end = em.state()
    step(0, True, True, True, FULL_E, FULL_L)
    assert em.sig() == sig_even_end, (em.sig(), sig_even_end)
    e(f's_branch {ODD}')
    em.check_backedge(em.lines[odd_line:odd_line+30])
    em.label(MASKED); em.set_state(st_odd_end)
    if ONEBLK: stamp(em, 6)
    step(0, True, True, True, FULL_E, FULL_L, masked=6)
    assert em.sig() == sig_even_end
    last_line = len(em.lines)
    em.label(LAST)
    lateV = [f for f in FULL_L if f[0] == 'v']
    qn = [[f'ds_read_b128 {vr(Q_+4*dg,4)}, v14 offset:{32768+dg*1024}' for dg in range(8)] + [rd(f) for f in lateV] + ['v_add_u32 v251, -64, v6']]
    step(1, False, True, True, VS, [], masked=251, pre=qn, post=hook_last)
    sv = em.state(); em.set_state(st_even_end); em.check_backedge(em.lines[last_line:last_line+30]); em.set_state(sv)
    l = L_[1]
    pre = [[f'v_mov_b32 v249, v{l}'], [f'v_permlane32_swap_b32 v{l}, v249'], [f'v_add_f32 v253, v{l}, v249', f'v_mov_b32 v252, v{NM}'],
           ['ds_write_b64 v9, v[252:253]']]
    step(0, False, False, True, KS, [], prebar=pre, postbar=[['ds_read_b64 v[254:255], v15']])
    stamp(em, 8)
    e('v_min_f32 v0, v252, v254'); e('v_sub_f32 v252, v0, v252'); e('v_sub_f32 v254, v0, v254')
    e('v_exp_f32 v252, v252'); e('v_exp_f32 v254, v254')
    e('v_mul_f32 v253, v253, v252'); e('v_fmac_f32 v253, v255, v254'); e('v_rcp_f32 v253, v253')
    e('v_mul_f32 v252, v252, v253')
    KEEP, SEND, JOIN = em.newlabel('mg'), em.newlabel('mg'), em.newlabel('mg')
    e('s_lshl_b32 s48, s63, 2'); e('s_add_u32 s48, s48, s41'); e('s_lshl_b32 s48, s48, 18')
    e('s_lshl_b32 s49, s45, 13'); e('s_add_u32 s48, s48, s49'); e('s_lshl_b32 s49, s40, 12'); e('s_add_u32 s48, s48, s49')
    e(f's_add_u32 s48, s48, {CTXF}')
    e('s_cmp_eq_u32 s40, 0'); e(f's_cbranch_scc0 {SEND}')
    st = em.state()
    for kh in (0, 1):
        if kh == 1: em.label(SEND); em.set_state(st)
        keep, send = O_ + 32 * kh, O_ + 32 * (1 - kh)
        for i in range(8):
            for j in range(4): e(f'v_mul_f32 v{send+4*i+j}, v{send+4*i+j}, v252')
            e(f'ds_write_b128 v15, {vr(send+4*i,4)} offset:{i*1024}')
        em.wait(lg=0); e('s_barrier')
        for i in range(8): e(f'ds_read_b128 {vr(S_[0]+4*i,4)}, v9 offset:{i*1024}')
        for c in range(4):
            for j in range(8): e(f'v_fmac_f32 v{S_[0]+8*c+j}, v{keep+8*c+j}, v252')
            for j in range(4): e(f'v_cvt_pk_bf16_f32 v{P_[0]+4*c+j}, v{S_[0]+8*c+2*j}, v{S_[0]+8*c+2*j+1}')
            e(f'buffer_store_dwordx4 {vr(P_[0]+4*c,4)}, v4, s[32:35], s48 offen offset:{c*1024}{CSC}')
        if kh == 0: e(f's_branch {JOIN}')
    em.label(JOIN)
    em.vm = []
    assert em.sig() == sig_blk
    e('s_mov_b32 s63, s46'); e('s_add_u32 s43, s43, 1'); e(f's_cmp_lt_u32 s43, {1 if ONEBLK else 2}'); e(f's_cbranch_scc1 {BLK}')
    em.check_backedge(em.lines[blk_line:blk_line+30])
    if hook_end: hook_end()
    stamp_out(em, kidx, 32, 44, 9, vt=10)
    em.label(END); e('s_endpgm')
    for fb, back, p, qk in fallbacks:
        em.label(fb); em.hist = []; em.lg = []; em.vm = []
        e('s_nop 15')
        rowmax(p)
        e('v_max_f32 v0, 0, v0')
        for i in range(16): e(f'v_sub_f32 v{NM+i}, v{NM+i}, v0')
        for i in range(16): e(f'v_sub_f32 v{S_[p]+i}, v{S_[p]+i}, v0')
        if qk:
            for i in range(16): e(f'v_sub_f32 v{S_[1-p]+i}, v{S_[1-p]+i}, v0')
        e('v_sub_f32 v0, 0, v0'); e('v_exp_f32 v0, v0')
        for i in range(64): e(f'v_mul_f32 v{O_+i}, v{O_+i}, v0')
        e(f'v_mul_f32 v{L_[1-p]}, v{L_[1-p]}, v0')
        weave(em, [], softmax_fill(p))
        e('s_nop 3'); e(f's_branch {back}')
```

```python
from em import *
from common import *
def gemm64(em, name, kidx, KG, AOFF, BOFF, final):
    e = em.e
    em.begin_kernel(name)
    END = em.newlabel('end')
    e('s_cmp_ge_u32 s2, 256'); e(f's_cbranch_scc1 {END}')
    stamp(em, 0)
    e('s_load_dwordx2 s[4:5], s[0:1], 0')
    e('s_load_dwordx2 s[6:7], s[0:1], 72')
    e('s_load_dwordx2 s[14:15], s[0:1], 88')
    e('v_and_b32 v1, 63, v0'); e('v_lshrrev_b32 v2, 6, v0'); e('v_readfirstlane_b32 s44, v2')
    e('s_and_b32 s45, s2, 7'); e('s_lshl_b32 s45, s45, 2')
    e('s_lshr_b32 s46, s2, 3'); e('s_and_b32 s47, s46, 3'); e('s_add_u32 s45, s45, s47')
    e('s_lshr_b32 s46, s46, 2')
    e('v_lshlrev_b32 v4, 4, v1')
    KW = KG // 4
    e(f's_mul_i32 s48, s46, {2*KG*1024}'); e(f's_add_u32 s48, s48, {AOFF}'); e('v_add_u32 v5, s48, v4')
    e(f'v_add_u32 v6, {KG*1024}, v5')
    e(f's_mul_i32 s48, s45, {2*KG*1024}'); e(f's_add_u32 s48, s48, {BOFF}'); e('v_add_u32 v7, s48, v4')
    e(f'v_add_u32 v8, {KG*1024}, v7')
    e(f's_mul_i32 s50, s44, {KW*1024}')
    RW = 0 if final else int(os.environ.get('RW', '0'))
    if RW:
        e('s_lshl_b32 s58, s47, 1'); e('s_add_u32 s58, s58, s46'); e('s_and_b32 s58, s58, 7'); e(f's_mul_i32 s58, s58, {RW * 512}'); e('s_and_b32 s58, s58, 0xfffff000')
        e('s_mov_b32 s59, s50'); e('s_add_u32 s50, s50, s58')
    em.wait(lg=0)
    srd(em, 32, 14, WS_SIZE); srd(em, 20, 4, 0x200000); srd(em, 24, 6, 0x200000)
    D = 8 if KW % 8 == 0 else 7
    FB, ACC = 96, 16
    def ld(k):
        sl = k % D; o = (k % 4) * 1024
        r = [f'buffer_load_dwordx4 {vr(FB+16*sl+4*i,4)}, v{5+i}, s[32:35], s50 offen offset:{o}' for i in (0, 2, 1, 3)]
        if k % 4 == 3:
            if RW:
                g = (k + 1) // 4
                r += [f's_add_u32 s50, s58, {(g % RW) * 4096}', f's_and_b32 s50, s50, {RW*4096-1}', 's_add_u32 s50, s50, s59']
                if (g + 1) % RW == 0: r.append(f's_add_u32 s59, s59, {RW*4096}')
            else: r.append('s_add_u32 s50, s50, 4096')
        return r
    def mm(k, z=None):
        b = FB + 16 * (k % D)
        return [mfma(ACC + 16 * (mi + 2 * qi), b + 4 * mi, b + 8 + 4 * qi, z) for qi in range(2) for mi in range(2)]
    for k in range(D): weave(em, [], ld(k))
    e('s_and_b32 s51, s44, 1'); e('s_lshr_b32 s52, s44, 1')
    e('s_lshl_b32 s53, s45, 1'); e('s_add_u32 s53, s53, s52')
    e('s_lshl_b32 s54, s46, 1'); e('s_add_u32 s54, s54, s51')
    e('v_and_b32 v9, 31, v1'); e('v_lshrrev_b32 v10, 5, v1')
    e('v_lshlrev_b32 v11, 10, v9'); e('v_lshlrev_b32 v12, 4, v10'); e('v_add_u32 v11, v11, v12')
    e('s_lshl_b32 s55, s53, 15'); e('s_lshl_b32 s56, s54, 6'); e('s_add_u32 s55, s55, s56')
    e('s_lshl_b32 s56, s53, 15'); e('s_lshl_b32 s57, s54, 11'); e('s_add_u32 s56, s56, s57'); e(f's_add_u32 s56, s56, {HF}')
    RES = 80
    def resld():
        if final:
            for c in range(2): e(f'buffer_load_dwordx4 {vr(RES+4*c,4)}, v4, s[32:35], s56 offen offset:{c*1024}')
        else:
            for c in range(2): e(f'buffer_load_dwordx4 {vr(RES+4*c,4)}, v11, s[20:23], s55 offen offset:{c*32}')
    stamp(em, 1)
    for k in range(KW):
        m = mm(k, '0' if k == 0 else None)
        l = ld(k + D) if k + D < KW else []
        e(m[0]); e(m[1]); e(m[2]); e(m[3])
        for x in l: e(x)
        if k + D == KW: resld()
    stamp(em, 2)
    e('s_lshl_b32 s48, s44, 12'); e('v_add_u32 v13, s48, v4')
    e('s_lshl_b32 s48, s44, 14'); e('v_add_u32 v14, s48, v4')
    for sub in range(4):
        for i in range(4): e(f'ds_write_b128 v13, {vr(ACC+16*sub+4*i,4)} offset:{sub*16384+i*1024}')
    em.wait(lg=0); e('s_barrier')
    for src in range(4):
        for i in range(4): e(f'ds_read_b128 {vr(FB+16*src+4*i,4)}, v14 offset:{src*4096+i*1024}')
    C = FB
    for i in range(16): e(f'v_add_f32 v{C+i}, v{C+i}, v{C+16+i}')
    for i in range(16): e(f'v_add_f32 v{C+32+i}, v{C+32+i}, v{C+48+i}')
    for i in range(16): e(f'v_add_f32 v{C+i}, v{C+i}, v{C+32+i}')
    if not final:
        for c in range(2):
            for j in range(2): e(f'v_permlane32_swap_b32 v{RES+4*c+j}, v{RES+4*c+2+j}')
    for c in range(8):
        e(f'v_lshlrev_b32 v{C+16+2*c}, 16, v{RES+c}'); e(f'v_and_b32 v{C+17+2*c}, 0xffff0000, v{RES+c}')
    for i in range(16): e(f'v_add_f32 v{C+i}, v{C+i}, v{C+16+i}')
    for c in range(8): e(f'v_cvt_pk_bf16_f32 v{RES+c}, v{C+2*c}, v{C+2*c+1}')
    if final:
        for c in range(2):
            for j in range(2): e(f'v_permlane32_swap_b32 v{RES+4*c+j}, v{RES+4*c+2+j}')
        for c in range(2): e(f'buffer_store_dwordx4 {vr(RES+4*c,4)}, v11, s[24:27], s55 offen offset:{c*32}')
    else:
        for c in range(2): e(f'buffer_store_dwordx4 {vr(RES+4*c,4)}, v4, s[32:35], s56 offen offset:{c*1024}')
        for c in range(8):
            e(f'v_lshlrev_b32 v{C+2*c}, 16, v{RES+c}'); e(f'v_and_b32 v{C+1+2*c}, 0xffff0000, v{RES+c}')
        e(f'v_add_f32 v16, v{C}, v{C+1}')
        for i in range(2, 16): e(f'v_add_f32 v16, v16, v{C+i}')
        e('v_mov_b32 v17, v16'); e('v_permlane32_swap_b32 v16, v17'); e('v_add_f32 v16, v16, v17')
        e('v_mul_f32 v18, 0x3d000000, v16')
        for i in range(16): e(f'v_sub_f32 v{C+i}, v{C+i}, v18')
        e(f'v_mul_f32 v17, v{C}, v{C}')
        for i in range(1, 16): e(f'v_fmac_f32 v17, v{C+i}, v{C+i}')
        e('v_mov_b32 v18, v17'); e('v_permlane32_swap_b32 v17, v18'); e('v_add_f32 v17, v17, v18')
        e('v_lshlrev_b32 v19, 7, v9'); e('v_lshlrev_b32 v20, 30, v10'); e('v_add_u32 v19, v19, v20')
        e('s_lshl_b32 s48, s53, 12'); e('s_lshl_b32 s49, s54, 3'); e('s_add_u32 s48, s48, s49'); e(f's_add_u32 s48, s48, {STATS}')
        e('buffer_store_dwordx2 v[16:17], v19, s[32:35], s48 offen')
    stamp_out(em, kidx, 32, 44, 3, vt=2)
    em.label(END); e('s_endpgm')
    nv = FB + 16 * D
    em.end_kernel(name, nv, nv)
    em.launch(name, 256, 256, 65536)
def gen_k3(em): gemm64(em, 'oproj_kernel', 2, 256, WOF, CTXF, False)
def gen_k5(em): gemm64(em, 'ffn2_kernel', 4, 112, W2F, AF, True)
```

```python
from em import *
from common import *
from k2 import *
WB = 98304
FLG = 72 * MB
def env(n, d): return int(os.environ.get(n, str(d)))
KP, VS0, NOTOUCH, TCS, XPS = env('KP', 28), env('VS0', 13), env('NOTOUCH', 0), env('TCS', 1), env('XPS', 8)
ROT, TW = env('ROT', 4), env('TW', 0)
SN = {n: i + 1 for i, n in enumerate(os.environ.get('SN', 'iss,c0,kv,k15,k23,q,att').split(','))}
def nst(em, n):
    if n in SN: stamp(em, SN[n])
def grp(l, n): return [l[i:i+n] for i in range(0, len(l), n)]
def merge(a, b):
    out = []; i = j = 0
    while i < len(a) or j < len(b):
        if j >= len(b) or (i < len(a) and i * len(b) <= j * len(a)): out.append(a[i]); i += 1
        else: out.append(b[j]); j += 1
    return out
def gen_kf(em, name='fused_kernel'):
    e = em.e
    em.begin_kernel(name)
    END = em.newlabel('kfend')
    e('s_cmp_ge_u32 s2, 256'); e(f's_cbranch_scc1 {END}')
    stamp(em, 0)
    e('s_load_dwordx4 s[4:7], s[0:1], 0')
    e('s_load_dwordx4 s[8:11], s[0:1], 16')
    e('s_load_dwordx4 s[12:15], s[0:1], 32')
    e('s_load_dwordx4 s[16:19], s[0:1], 56')
    e('s_load_dwordx4 s[68:71], s[0:1], 80')
    e('v_and_b32 v1, 63, v0'); e('v_lshrrev_b32 v2, 6, v0'); e('v_readfirstlane_b32 s44, v2')
    e('s_and_b32 s45, s2, 7'); e('s_lshl_b32 s45, s45, 2')
    e('s_lshr_b32 s46, s2, 3'); e('s_and_b32 s3, s46, 3'); e('s_add_u32 s45, s45, s3')
    e('s_lshr_b32 s46, s46, 2')
    A, B, C, D = 80, 81, 82, 83
    def lanebits(A, B, D, S, T):
        return [f'v_lshrrev_b32 v{A}, 4, v1', f'v_and_b32 v{B}, 3, v1', f'v_bfe_u32 v{D}, v1, 2, 2',
                f'v_xor_b32 v{S}, v{D}, v{A}', f'v_lshlrev_b32 v{S}, 6, v{S}', f'v_lshlrev_b32 v{T}, 4, v{B}', f'v_add_u32 v{S}, v{S}, v{T}']
    weave(em, [], lanebits(A, B, D, 85, 84))
    e(f'v_lshrrev_b32 v{C}, 3, v1')
    e('v_and_b32 v84, 7, v1'); e(f'v_xor_b32 v84, v84, v{A}'); e('v_lshlrev_b32 v84, 4, v84')
    e(f'v_lshlrev_b32 v10, 10, v{C}'); e('v_add_u32 v10, v10, v84')
    e('s_lshl_b32 s48, s46, 18'); e('s_lshl_b32 s49, s44, 15'); e('s_add_u32 s48, s48, s49')
    e('v_add_u32 v10, s48, v10')
    e('v_xor_b32 v13, 64, v10'); e('v_add_u32 v13, 0x2000, v13')
    e(f'v_lshlrev_b32 v11, 13, v{A}'); e('v_add_u32 v11, v11, v85')
    e('s_lshl_b32 s48, s44, 15'); e('s_lshl_b32 s49, s45, 8'); e('s_add_u32 s48, s48, s49')
    e('v_add_u32 v11, s48, v11')
    e('s_lshl_b32 s60, s44, 12'); e('s_lshl_b32 s61, s44, 10')
    e('v_lshlrev_b32 v4, 4, v1')
    if ROT == 8: e('s_lshl_b32 s100, s3, 1'); e('s_add_u32 s100, s100, s46'); e('s_and_b32 s100, s100, 7')
    elif ROT == 4: e('s_add_u32 s100, s3, s46'); e('s_and_b32 s100, s100, 3'); e('s_lshl_b32 s100, s100, 1')
    elif ROT == 2: e('s_add_u32 s100, s3, s46'); e('s_and_b32 s100, s100, 1'); e('s_lshl_b32 s100, s100, 2')
    else: e('s_mov_b32 s100, 0')
    e('s_lshl_b32 s101, s100, 19'); e('s_lshl_b32 s100, s100, 7')
    em.wait(lg=0)
    srd(em, 20, 6, 0x200000); srd(em, 24, 10, 0x400000); srd(em, 28, 12, 0x400000)
    def dmaD(n):
        sl = ((n + 1) % 3) * 32768
        if n >= 8:
            return [[f's_add_u32 m0, s61, {sl+i*8192}', f's_mov_b32 s62, {((n-8)*128+32*i)*8192}', (f'buffer_load_dwordx4 v11, s[4:7], s62 offen lds', f'd{n}')] for i in range(4)]
        return [[f's_add_u32 m0, s60, {sl+i*1024}', f's_add_u32 s62, s100, {n*128}', 's_and_b32 s62, s62, 1023'] + ([f's_add_u32 s62, s62, 16384'] if i >> 1 else []) + [(f'buffer_load_dwordx4 v{13 if i&1 else 10}, s[20:23], s62 offen lds', f'd{n}')] for i in range(4)]
    def dmaW(c):
        sl = WB + (c & 3) * 16384
        if c >= 16:
            return [[f's_add_u32 m0, s61, {sl+i*8192}', f's_mov_b32 s62, {(256+(c-16)*64+32*i)*8192}', (f'buffer_load_dwordx4 v11, s[4:7], s62 offen lds', f'w{c}')] for i in range(2)]
        return [[f's_add_u32 m0, s61, {sl+i*8192}', f's_add_u32 s62, s101, {c*32*8192}', 's_and_b32 s62, s62, 0x3fffff', (f'buffer_load_dwordx4 v11, s[{24+4*i}:{27+4*i}], s62 offen lds', f'w{c}')] for i in range(2)]
    weave(em, [], dmaW(0) + dmaD(0))
    srd(em, 32, 70, WS_SIZE); srd(em, 40, 4, 0x200000)
    e('s_sub_u32 s47, 15, s46')
    T1, T2, TJ = em.newlabel('t'), em.newlabel('t'), em.newlabel('t')
    e(f's_mov_b32 s58, {OOB}')
    e('s_cmp_ge_u32 s44, 3'); e(f's_cbranch_scc1 {T1}')
    st = em.state()
    srd(em, 72, 6, 0x200000)
    e('s_lshl_b32 s48, s46, 8'); e('s_lshl_b32 s49, s3, 6'); e('s_add_u32 s48, s48, s49')
    e('v_add_u32 v7, s48, v1'); e('v_lshlrev_b32 v7, 10, v7')
    e('s_cmp_eq_u32 s44, 0'); e('s_cselect_b32 s63, 128, s58')
    e('s_lshl_b32 s48, s44, 7'); e('s_add_u32 s64, s48, 256'); e('s_add_u32 s65, s48, 640')
    e(f's_branch {TJ}')
    em.label(T1); em.set_state(st)
    e(f'v_lshlrev_b32 v7, 5, v{C}'); e('v_bfe_u32 v84, v1, 1, 2'); e('v_add_u32 v7, v7, v84')
    e('s_lshl_b32 s48, s46, 2'); e('v_add_u32 v7, s48, v7'); e('v_lshlrev_b32 v7, 13, v7')
    e('v_and_b32 v84, 1, v1'); e('v_lshlrev_b32 v84, 7, v84'); e('s_lshl_b32 s48, s45, 8'); e('v_add3_u32 v7, v7, v84, s48')
    e('s_cmp_ge_u32 s44, 5'); e(f's_cbranch_scc1 {T2}')
    st = em.state()
    e('s_cmp_eq_u32 s44, 3'); e('s_cselect_b32 s72, s10, s12'); e('s_cselect_b32 s73, s11, s13')
    e('s_mov_b32 s74, 0x400000'); e('s_mov_b32 s75, 0x20000')
    e(f's_mov_b32 s63, {32*8192}'); e(f's_mov_b32 s64, {9*32*8192}'); e('s_mov_b32 s65, s58')
    e(f's_branch {TJ}')
    em.label(T2); em.set_state(st)
    srd(em, 72, 8, 0x400000)
    e('s_mov_b32 s63, s58'); e('s_mov_b32 s64, s58')
    e('s_sub_u32 s65, s44, 5'); e('s_lshl_b32 s65, s65, 21')
    em.label(TJ)
    if NOTOUCH:
        for r in (63, 64, 65): e(f's_mov_b32 s{r}, s58')
    if not TW & 1: e('s_mov_b32 s63, s58')
    if not TW & 2: e('s_mov_b32 s64, s58')
    if not TW & 4: e('s_cmp_lt_u32 s44, 5'); e('s_cselect_b32 s65, s58, s65')
    e('s_lshl_b32 s50, s45, 3')
    e('s_cmp_lt_u32 s50, 128'); e('s_cselect_b32 s48, s47, s46'); e('s_lshl_b32 s48, s48, 7')
    e('s_and_b32 s50, s50, 127'); e('s_add_u32 s50, s50, s48')
    e('s_add_u32 s48, s50, s44'); e('s_lshl_b32 s48, s48, 10')
    e('s_barrier')
    e('buffer_load_dwordx4 v[88:91], v4, s[40:43], s48 offen')
    e('buffer_load_dword v126, v7, s[72:75], s63 offen')
    e('s_lshr_b32 s48, s50, 5'); e('s_lshl_b32 s48, s48, 15'); e('s_and_b32 s49, s50, 31'); e('s_lshl_b32 s49, s49, 4')
    e('s_add_u32 s48, s48, s49'); e('s_add_u32 s48, s48, s60'); e(f's_add_u32 s66, s48, {XNF}')
    srd(em, 4, 8, 0x400000); srd(em, 8, 68, 256)
    e('s_lshl_b32 s50, s2, 3'); e('s_add_u32 s50, s50, s44')
    e('s_min_u32 s55, s50, 1919')
    L1, L2, LJ = em.newlabel('t'), em.newlabel('t'), em.newlabel('t')
    e('s_cmp_ge_u32 s55, 1024'); e(f's_cbranch_scc1 {L1}')
    st = em.state()
    srd(em, 36, 14, 0x400000); e('s_mov_b32 s51, 1024')
    e('s_lshr_b32 s56, s55, 2'); e('s_and_b32 s57, s55, 3')
    e(f's_mov_b32 s53, {WOF}'); e(f's_mov_b32 s54, {256*1024}'); e(f's_branch {LJ}')
    em.label(L1); em.set_state(st)
    e('s_cmp_ge_u32 s55, 1472'); e(f's_cbranch_scc1 {L2}')
    srd(em, 36, 16, 512*3584); e('s_mov_b32 s51, 3584')
    e('s_sub_u32 s55, s55, 1024'); e('s_mul_i32 s56, s55, 4682'); e('s_lshr_b32 s56, s56, 16')
    e('s_mul_i32 s57, s56, 14'); e('s_sub_u32 s57, s55, s57')
    e(f's_mov_b32 s53, {W1F}'); e(f's_mov_b32 s54, {32*1024}'); e(f's_branch {LJ}')
    em.label(L2); em.set_state(st)
    srd(em, 36, 18, 1792*1024); e('s_mov_b32 s51, 1024')
    e('s_sub_u32 s55, s55, 1472'); e('s_lshr_b32 s56, s55, 2'); e('s_and_b32 s57, s55, 3')
    e(f's_mov_b32 s53, {W2F}'); e(f's_mov_b32 s54, {112*1024}')
    em.label(LJ)
    e('s_mul_i32 s52, s56, s51'); e('s_lshl_b32 s52, s52, 4'); e('s_lshl_b32 s55, s57, 8'); e('s_add_u32 s12, s52, s55')
    e('s_lshl_b32 s55, s57, 2'); e('s_mul_i32 s55, s55, s54'); e('s_add_u32 s53, s53, s55')
    e('s_lshl_b32 s55, s56, 10'); e('s_add_u32 s13, s53, s55')
    e('s_mov_b32 s14, s54'); e('s_mov_b32 s15, s51')
    e('v_and_b32 v86, 31, v1'); e('v_lshrrev_b32 v87, 5, v1')
    e('v_bfe_u32 v84, v1, 1, 3'); e('v_xor_b32 v14, v87, v84'); e('v_lshlrev_b32 v14, 4, v14')
    e('v_lshlrev_b32 v84, 7, v86'); e('v_add_u32 v14, v14, v84')
    e('s_and_b32 s41, s44, 3'); e('s_lshl_b32 s48, s41, 13')
    e('v_add_u32 v14, s48, v14')
    for i in range(1, 4): e(f'v_xor_b32 v{14+i}, {32*i}, v14')
    for i in range(4): e(f'v_add_u32 v{24+i}, 0x10000, v{14+i}')
    def traddr(A, B, D, H, T, U, sh, sbase, dst):
        r = [f'v_and_b32 v{T}, 1, v{A}', f'v_lshlrev_b32 v{T}, 5, v{T}', f'v_lshlrev_b32 v{U}, 3, v{B}', f'v_add_u32 v{T}, v{T}, v{U}',
             f'v_lshlrev_b32 v{U}, 8, v{D}', f'v_add_u32 v{T}, v{T}, v{U}', f'v_lshlrev_b32 v{U}, {sh}, v{H}', f'v_add_u32 v{T}, v{T}, v{U}']
        for db in range(4): r += [f'v_xor_b32 v{U}, {db}, v{D}', f'v_lshlrev_b32 v{U}, 6, v{U}', f'v_add3_u32 v{dst+db}, v{T}, v{U}, s{sbase}']
        return r
    e('s_lshr_b32 s40, s44, 2'); e('s_lshl_b32 s67, s40, 13'); e(f's_add_u32 s48, s67, {WB}')
    weave(em, [], traddr(A, B, D, 87, 92, 93, 11, 48, 20))
    e('s_lshl_b32 s48, s44, 11'); e('v_add_u32 v5, s48, v4')
    e('v_add_u32 v3, s67, v4')
    e('s_sub_u32 s48, s41, s40'); e('s_lshl_b32 s48, s48, 5')
    e('v_lshlrev_b32 v93, 2, v87'); e('v_sub_u32 v6, v86, v93'); e('v_add_u32 v6, s48, v6')
    e('v_add_u32 v9, 0x2000, v4')
    weave(em, [], dmaW(1))
    e('s_lshl_b32 s48, s46, 5'); e('s_add_u32 s48, s48, s45')
    e('v_lshlrev_b32 v8, 8, v0'); e('v_add_u32 v8, s48, v8')
    e('v_cmp_eq_u32 vcc, 0, v0'); e('s_lshl_b32 s48, s46, 2'); e('v_mov_b32 v92, s48'); e('v_mov_b32 v93, s58'); e('v_cndmask_b32 v28, v93, v92, vcc')
    e('s_lshl_b32 s16, s45, 8'); e(f's_add_u32 s16, s16, {FLG}')
    e('s_cmp_eq_u32 s44, 4'); e('s_cselect_b32 s48, 0, s58'); e('s_cselect_b64 s[56:57], -1, 0')
    e('v_lshlrev_b32 v18, 2, v1'); e('v_add_u32 v18, s48, v18')
    e(f'v_cmp_eq_u32 vcc, s46, v{C}'); e('v_mov_b32 v92, 0x01010101'); e('v_cndmask_b32 v19, 0, v92, vcc')
    e('v_and_b32 v93, 7, v1'); e('s_lshr_b32 s48, s45, 2'); e('v_cmp_eq_u32 vcc, s48, v93')
    e('s_lshl_b32 s48, s3, 3'); e('s_lshl_b32 s48, 1, s48'); e('v_mov_b32 v92, s48'); e('v_cndmask_b32 v92, 0, v92, vcc')
    e('v_or_b32 v19, v19, v92'); e('v_cndmask_b32 v19, 0, v19, s[56:57]')
    e('s_lshr_b32 s48, s47, 1'); e('v_cmp_ge_u32 vcc, s48, v1'); e('s_and_b64 vcc, vcc, s[56:57]'); e('v_cndmask_b32 v12, 0, 1, vcc')
    e('s_cmp_eq_u32 s40, 0'); e('s_cselect_b32 s48, s47, s46'); e('s_lshl_b32 s48, s48, 2'); e('s_add_u32 s48, s48, s41')
    e('s_lshl_b32 s48, s48, 15'); e(f's_add_u32 s42, s48, {XNF}')
    nst(em, 'iss')
    spins = []
    def poll_ld(v, kv): return f'buffer_load_dword v{v}, v18, s[32:35], s16 offen sc1' if kv else f'buffer_load_dword v{v}, v18, s[8:11], 0 offen sc1'
    def poll_chk(v, mask, kv):
        sp, back = em.newlabel('spin'), em.newlabel('spb')
        e(f'v_and_b32 v{v}, v{v}, v{mask}'); e(f'v_cmp_ne_u32 vcc, v{v}, v{mask}'); e(f's_cbranch_vccnz {sp}')
        em.label(back); spins.append((sp, back, v, mask, kv))
    def kvflag(val, t): return [f'v_mov_b32 v{t}, {val}', f'buffer_store_dword v{t}, v28, s[32:35], s16 offen sc1']
    X = 96; ln = []
    for j in range(4): ln += [f'v_lshlrev_b32 v{X+2*j}, 16, v{88+j}', f'v_and_b32 v{X+1+2*j}, 0xffff0000, v{88+j}']
    def allsum(v):
        r = [f'v_add_f32_dpp v{v}, v{v}, v{v} {m} row_mask:0xf bank_mask:0xf' for m in ('quad_perm:[1,0,3,2]', 'quad_perm:[2,3,0,1]', 'row_half_mirror', 'row_mirror')]
        r += [f'v_readlane_b32 s{68+k}, v{v}, {16*k}' for k in range(4)]
        r += [f'v_mov_b32 v{v}, s68', f'v_add_f32 v{v}, s69, v{v}', f'v_add_f32 v{v}, s70, v{v}', f'v_add_f32 v{v}, s71, v{v}']
        return r
    ln += [f'v_add_f32 v104, v{X}, v{X+1}'] + [f'v_add_f32 v104, v104, v{X+j}' for j in range(2, 8)]
    ln += allsum(104) + ['v_mul_f32 v104, 0x3b000000, v104'] + [f'v_sub_f32 v{X+j}, v{X+j}, v104' for j in range(8)]
    ln += [f'v_mul_f32 v105, v{X}, v{X}'] + [f'v_fmac_f32 v105, v{X+j}, v{X+j}' for j in range(1, 8)]
    ln += allsum(105) + ['v_mov_b32 v106, 0x3727c5ac', 'v_fmac_f32 v106, 0x3b000000, v105', 'v_rsq_f32 v106, v106']
    ln += ['v_lshlrev_b32 v104, 7, v1', 's_lshl_b32 s48, s44, 4', 'v_add_u32 v104, s48, v104']
    ln += [f'v_mul_f32 v{X+j}, v{X+j}, v106' for j in range(8)]
    ln += [f'v_cvt_pk_bf16_f32 v{88+j}, v{X+2*j}, v{X+1+2*j}' for j in range(4)]
    ln += ['ds_write_b128 v104, v[88:91]']
    ln2 = ['v_add_u32 v104, s61, v4', 'ds_read_b128 v[88:91], v104', f'v_lshlrev_b32 v105, 9, v{C}', 'v_and_b32 v106, 7, v1', 'v_lshlrev_b32 v106, 4, v106', 'v_add_u32 v105, v105, v106']
    ln3 = ['buffer_store_dwordx4 v[88:91], v105, s[32:35], s66 offen sc1']
    n3 = (len(ln) + 2) // 3
    ACC = 128
    def acc(db, t): return ACC + 16 * (db * 2 + t)
    def xf(k):
        k &= 15
        return 80 + 4 * k if k < 12 else 64 + 4 * (k - 12)
    def xld(k):
        r = [f'buffer_load_dwordx4 {vr(xf(k),4)}, v4, s[32:35], s42 offen offset:{(k%4)*1024} sc1']
        if k % 4 == 3: r.append('s_add_u32 s42, s42, 4096')
        return r
    def inv():
        l = em.newlabel('inv'); e('s_cmp_lg_u32 s44, 7'); e(f's_cbranch_scc1 {l}'); em.raw('buffer_inv sc1'); em.label(l)
    xa = {c: [] for c in range(16)}; xb = {c: [] for c in range(16)}; xp = {c: [] for c in range(16)}
    dm = {c: dmaW(c + 4) for c in range(16)}
    for n in range(3, 10): d = dmaD(n); dm[2*n-5] += d[:2]; dm[2*n-4] += d[2:]
    xa[0] = merge(dmaD(1) + dmaW(2) + dmaW(3) + [['buffer_load_dword v127, v7, s[72:75], s64 offen'], kvflag(0, 124)], grp(ln[:n3], 3))
    xb[0] = grp(ln[n3:2*n3], 4); xa[1] = grp(ln[2*n3:], 3)
    xb[1] = [ln2]; xa[2] = [ln3]
    dm[2] = dmaD(2) + dm[2]
    xb[TCS] += [['buffer_load_dword v125, v7, s[72:75], s65 offen']]
    if env('INV', 0): xb[4] += [inv]
    xb[3] += [['v_mov_b32 v124, 1', 'buffer_store_byte v124, v8, s[8:11], 0 offen sc1']]
    xa[XPS] += [[poll_ld(124, 0)]]
    xp[XPS + 1] = [lambda: poll_chk(124, 19, 0)]
    xb[XPS + 1] += [['s_lshl_b32 s48, s3, 13', 's_add_u32 s48, s48, s42', 'v_lshlrev_b32 v7, 7, v1', 'buffer_load_dword v127, v7, s[32:35], s48 offen sc1']] if env('XT', 0) else []
    order = [(xa, 12), (xb, 12), (xa, 13), (xb, 13), (xa, 14), (xb, 14)]
    for k in range(12): d, c = order[k // 2]; d[c].append(xld(k))
    FC = [32, 56]; FW = [40, 64]
    def reads(c, ks):
        sl = ((c // 2 + 1) % 3) * 32768; hi = sl >= 65536; o = sl & 0xffff
        ca = (24 if hi else 14) + (c & 1) * 2 + ks; ow = (c & 3) * 16384 + ks * 4096
        r = [f'ds_read_b128 {vr(FC[ks],4)}, v{ca} offset:{o}']
        for db in range(4):
            r.append(f'ds_read_b64_tr_b16 {vr(FW[ks]+4*db,2)}, v{20+db} offset:{ow}')
            r.append(f'ds_read_b64_tr_b16 {vr(FW[ks]+4*db+2,2)}, v{20+db} offset:{ow+1024}')
            if db == 0: r.append(f'ds_read_b128 {vr(FC[ks]+4,4)}, v{ca} offset:{o+4096}')
        return r
    WF = [32, 48]
    def wreads(k):
        o = (k & 15) * 4096; a = 20 if k >= 16 else 24
        r = []
        for db in range(4):
            r.append(f'ds_read_b64_tr_b16 {vr(WF[k&1]+4*db,2)}, v{a+db} offset:{o}')
            r.append(f'ds_read_b64_tr_b16 {vr(WF[k&1]+4*db+2,2)}, v{a+db} offset:{o+1024}')
        return r
    def kvst(n):
        db, t, hf = n >> 2, (n >> 1) & 1, n & 1
        r = [(f'buffer_store_dwordx4 {vr(acc(db,0)+4*(n&3),4)}, v{9 if t else 4}, s[32:35], s{18 if hf else 17} offen sc1', 'st')]
        if n & 3 == 3: r += ['s_add_u32 s17, s17, s19', 's_add_u32 s18, s18, s19']
        return r
    pkinit = ['s_lshl_b32 s60, s44, 11', 's_mov_b32 s50, 0', 's_lshl_b32 s51, s47, 1', 's_add_u32 s51, s51, 2', 's_lshl_b32 s52, s46, 1', 's_add_u32 s52, s52, 2',
              's_add_u32 s53, s60, 65536', 's_lshl_b32 s54, s45, 19', f's_add_u32 s55, s54, {VF - 32768}', f's_add_u32 s59, s60, 98304']
    assert KF == 0
    def pkg():
        return [['s_lshl_b32 s56, s50, 14', 's_add_u32 s57, s56, s55', 's_add_u32 s56, s56, s54',
                 's_cmp_lt_u32 s50, s51', 's_cselect_b32 s56, s56, s58', 's_mov_b32 m0, s53', 's_cmp_ge_u32 s50, 2',
                 ('buffer_load_dwordx4 v5, s[32:35], s56 offen sc1 lds', 'pk')],
                [('buffer_load_dwordx4 v5, s[32:35], s56 offen offset:1024 sc1 lds', 'pk'),
                 's_cselect_b32 s57, s57, s58', 's_add_u32 m0, s53, 16384', 's_add_u32 s50, s50, 1'],
                [('buffer_load_dwordx4 v5, s[32:35], s57 offen sc1 lds', 'pk'),
                 's_add_u32 s56, s51, 2', 's_cmp_eq_u32 s50, s56', 's_cselect_b32 s50, 0, s50', 's_cselect_b32 s51, s52, s51', 's_cselect_b32 s52, 0, s52'],
                [('buffer_load_dwordx4 v5, s[32:35], s57 offen offset:1024 sc1 lds', 'pk'),
                 's_add_u32 s53, s53, 32768', 's_cmp_eq_u32 s53, s59', 's_cselect_b32 s53, s60, s53']]
    QA_ = [acc(db, 1) for db in range(4)]
    em.wait_tag('d0')
    nst(em, 'c0')
    e('s_barrier')
    weave(em, [], reads(0, 0))
    LV, LQ = em.newlabel('kv'), em.newlabel('kq')
    e('s_cmp_ge_u32 s44, 4'); e(f's_cbranch_scc1 {LV}')
    st = em.state()
    for role in (0, 1):
        if role == 1: em.label(LV); em.set_state(st)
        def mf(c, ks):
            out = []
            for db in range(4):
                for t in range(2):
                    w, cf = FW[ks] + 4 * db, FC[ks] + 4 * t
                    z = '0' if (c == 0 and ks == 0) else None
                    out.append(mfma(acc(db, t), w, cf, z) if role == 0 else mfma(acc(db, t), cf, w, z))
            return out
        for c in range(16):
            rg = grp(reads(c, 1), 2)
            fa = [[rg[i] if i < 5 else None] + xa[c][i * len(xa[c]) // 8:(i + 1) * len(xa[c]) // 8] for i in range(8)]
            weave(em, mf(c, 0), fa, per=1)
            m = mf(c, 1)
            em.wait(lg=0)
            e(m[0]); e(m[1])
            if c < 15: em.wait_tag(f'w{c+1}')
            if c & 1: em.wait_tag(f'd{(c+1)//2}')
            weave(em, [], xp[c])
            e('s_barrier')
            nst(em, f's{c}')
            if c < 15: fill = reads(c + 1, 0)
            else: fill = [[f'v_subrev_u32 v{20+i}, s67, v{20+i}' for i in range(4)] + [f'v_add_u32 v{24+i}, {-WB&0xffffffff}, v{20+i}' for i in range(4)]] + wreads(0) + [None]
            fill = fill[:5] + merge(fill[5:], dm[c])
            weave(em, [None] + m[2:], merge(fill, xb[c]))
        e('s_lshl_b32 s48, s45, 6'); e('s_lshl_b32 s49, s46, 3'); e('s_add_u32 s48, s48, s49')
        e('s_lshl_b32 s49, s41, 1'); e('s_add_u32 s48, s48, s49'); e('s_lshl_b32 s48, s48, 13')
        e(f's_add_u32 s17, s48, {VF if role else KF}'); e(f's_add_u32 s18, s17, {4096 if role else 1024}')
        e(f's_mov_b32 s19, {1024 if role else 2048}')
        nst(em, 'kv')
        for db in range(4):
            for t in range(2):
                for j in range(8): e(f'v_cvt_pk_bf16_f32 v{acc(db,0)+8*t+j}, v{acc(db,t)+2*j}, v{acc(db,t)+2*j+1}')
            if db == 1:
                for k in range(12, 16): weave(em, [], xld(k))
        xq = {k: [] for k in range(32)}
        for k in range(16): xq[k + 1].append(xld(16 + k)); xq[k + role * VS0].append(kvst(k))
        xq[9] += grp(pkinit, 3)
        xq[23] = [kvflag(1, 19)] + xq[23]
        xq[KP].append([poll_ld(13, 1)])
        for k in range(32):
            m = [mfma(QA_[db], WF[k&1] + 4 * db, xf(k), '0' if k == 0 else None) for db in range(4)]
            nxt = grp(wreads(k + 1), 2) if k < 31 else []
            if k % 8 == 7 and k < 31:
                em.wait(lg=0); e(m[0])
                em.wait_tag({7: 'd9', 15: 'w17', 23: 'w19'}[k])
                if k == 23 and role == 0: em.wait_tag('st')
                e('s_barrier')
                nst(em, f'k{k}')
                weave(em, [None] + m[1:], merge(nxt, xq[k]))
            else: weave(em, m, merge(nxt, xq[k]))
        nst(em, 'q')
        poll_chk(13, 12, 1)
        e(f's_mov_b32 s48, {QSCALE}')
        for db in range(4):
            for j in range(16): e(f'v_mul_f32 v{QA_[db]+j}, s48, v{QA_[db]+j}')
            for j in range(8): e(f'v_cvt_pk_bf16_f32 v{80+8*db+j}, v{QA_[db]+2*j}, v{QA_[db]+2*j+1}')
        em.wait(vm=0)
        if role == 0: e(f's_branch {LQ}'); sig0 = em.sig()
        else: assert em.sig() == sig0
    em.label(LQ)
    e('s_barrier')
    nst(em, 'qb')
    weave(em, [], [kvflag(3, 19)] + pkg() + pkg())
    e('s_lshl_b32 s49, s44, 13'); e(f's_add_u32 s49, s49, {XB}'); e('v_add_u32 v9, s49, v4')
    for dg in range(8): e(f'ds_write_b128 v9, {vr(80+4*dg,4)} offset:{dg*1024}')
    e('s_xor_b32 s49, s44, 4'); e('s_lshl_b32 s49, s49, 13'); e(f's_add_u32 s49, s49, {XB}'); e('v_add_u32 v15, s49, v4')
    e('s_lshl_b32 s49, s41, 13'); e(f's_add_u32 s49, s49, {XB}'); e('v_add_u32 v14, s49, v4')
    e('s_mov_b32 s62, 65536'); e('v_add_u32 v2, s62, v3')
    e('s_mov_b32 s63, s47'); e('s_mov_b32 s43, 0')
    e(f's_mov_b32 s64, {f2u(2.0**60)}'); e('s_mov_b32 s65, 0xff800000')
    e('v_lshlrev_b32 v12, 1, v12')
    e(poll_ld(13, 1)); poll_chk(13, 12, 1)
    em.wait(vm=0, lg=0); e('s_barrier')
    weave(em, [], pkg())
    nst(em, 'att')
    def hook_last():
        l = em.newlabel('hl'); e('s_cmp_eq_u32 s43, 0'); e(f's_cbranch_scc1 {l}')
        sv = em.state()
        e('s_cmp_eq_u32 s53, s60'); e('s_cselect_b32 s20, s59, s53'); e('s_sub_u32 s20, s20, 32768')
        weave(em, [], lanebits(16, 17, 18, 19, 20))
        e('v_mul_lo_u32 v21, v16, s15'); e('v_add_u32 v21, v21, v19'); e('s_lshl_b32 s21, s15, 2')
        for i in range(4):
            e(f's_add_u32 m0, s20, {(i&1)*1024 + (i>>1)*16384}'); e('buffer_load_dwordx4 v21, s[36:39], s12 offen lds'); e('s_add_u32 s12, s12, s21')
        e('v_lshrrev_b32 v19, 5, v1')
        weave(em, [], traddr(16, 17, 18, 19, 20, 21, 10, 20, 24))
        em.label(l); em.lg = sv[1]
    def hook_end():
        em.wait_force('vmcnt(8)')
        for db in range(4):
            e(f'ds_read_b64_tr_b16 v[{32+4*db}:{33+4*db}], v{24+db}'); e(f'ds_read_b64_tr_b16 v[{34+4*db}:{35+4*db}], v{24+db} offset:16384')
        for db in range(4):
            e(f'buffer_store_dwordx4 v[{32+4*db}:{35+4*db}], v4, s[32:35], s13 offen'); e('s_add_u32 s13, s13, s14')
    attn_main(em, pkg, END, 0, hook_last, hook_end)
    for sp, back, v, mask, kv in spins:
        em.label(sp); em.hist = []; em.lg = []; em.vm = []
        lp = em.newlabel('sl')
        e('s_mov_b32 s48, 0x10000')
        em.label(lp)
        e('s_sleep 4')
        e(poll_ld(v, kv)); em.wait_force('vmcnt(0)')
        e(f'v_and_b32 v{v}, v{v}, v{mask}'); e(f'v_cmp_ne_u32 vcc, v{v}, v{mask}')
        e('s_sub_u32 s48, s48, 1'); e('s_cmp_eq_u32 s48, 0'); e(f's_cbranch_scc1 {back}')
        e(f's_cbranch_vccnz {lp}'); e(f's_branch {back}')
    em.end_kernel(name, 256, 256)
    em.launch(name, 256, 512, 163840)
```

```python
from em import *
from common import *
FLG = 72 * MB
OOB = 0x40000000
def env(n, d): return int(os.environ.get(n, str(d)))
NPRE, TD = env('NPRE', 20), env('TD', 3)
def gen_kt(em, name='tail_kernel', kidx=2):
    e = em.e
    em.begin_kernel(name)
    END = em.newlabel('end')
    e('s_cmp_ge_u32 s2, 256'); e(f's_cbranch_scc1 {END}')
    stamp(em, 0)
    e('s_load_dwordx2 s[4:5], s[0:1], 0')
    e('s_load_dwordx2 s[6:7], s[0:1], 72')
    e('s_load_dwordx2 s[14:15], s[0:1], 88')
    e('v_and_b32 v1, 63, v0'); e('v_lshrrev_b32 v2, 6, v0'); e('v_readfirstlane_b32 s44, v2')
    e('s_and_b32 s45, s2, 7'); e('s_lshl_b32 s45, s45, 2')
    e('s_lshr_b32 s46, s2, 3'); e('s_and_b32 s47, s46, 3'); e('s_add_u32 s45, s45, s47')
    e('s_lshr_b32 s46, s46, 2')
    e('v_lshlrev_b32 v4, 4, v1')
    e('s_lshl_b32 s48, s46, 19'); e(f's_add_u32 s48, s48, {WOF}'); e('v_add_u32 v5, s48, v4'); e(f'v_add_u32 v6, {256*1024}, v5')
    e('s_lshl_b32 s48, s45, 19'); e(f's_add_u32 s48, s48, {CTXF}'); e('v_add_u32 v7, s48, v4'); e(f'v_add_u32 v8, {256*1024}, v7')
    e('s_lshl_b32 s50, s44, 15')
    em.wait(lg=0)
    srd(em, 32, 14, WS_SIZE)
    ACC, FB, W, RES = 16, 80, 128, 12
    D = TD
    def fb(k): return FB + 16 * (k % 3) if D == 3 or k % 4 < 3 else 240
    if D == 4:
        def fb(k): return (80, 96, 112, 240)[k % 4]
    def ld(k):
        o = (k % 4) * 1024
        r = [f'buffer_load_dwordx4 {vr(fb(k)+4*i,4)}, v{5+i}, s[32:35], s50 offen offset:{o}' for i in (0, 2, 1, 3)]
        if k % 4 == 3: r.append('s_add_u32 s50, s50, 4096')
        return r
    for k in range(D): weave(em, [], ld(k))
    srd(em, 20, 4, 0x200000); srd(em, 24, 6, 0x200000)
    e('s_bfe_u32 s51, s44, 0x10001'); e('s_lshr_b32 s52, s44, 2'); e('s_and_b32 s49, s44, 1')
    e('s_lshl_b32 s53, s45, 1'); e('s_add_u32 s53, s53, s52')
    e('s_lshl_b32 s54, s46, 1'); e('s_add_u32 s54, s54, s51'); e('s_lshl_b32 s54, s54, 1'); e('s_add_u32 s54, s54, s49')
    e('v_and_b32 v2, 31, v1'); e('v_lshrrev_b32 v3, 5, v1')
    e('v_lshlrev_b32 v9, 10, v2'); e('v_lshlrev_b32 v10, 4, v3'); e('v_add_u32 v9, v9, v10')
    e('s_lshl_b32 s55, s53, 15'); e('s_lshl_b32 s56, s54, 5'); e('s_add_u32 s55, s55, s56')
    e('s_lshl_b32 s56, s53, 15'); e('s_lshl_b32 s57, s54, 10'); e('s_add_u32 s56, s56, s57'); e(f's_add_u32 s56, s56, {HF}')
    e('s_lshl_b32 s57, s53, 13'); e('s_lshl_b32 s48, s54, 8'); e('s_add_u32 s57, s57, s48'); e(f's_add_u32 s57, s57, {STATS}')
    e(f's_mul_i32 s58, s46, {2*112*1024}'); e(f's_mul_i32 s48, s44, {14*1024}'); e('s_add_u32 s58, s58, s48'); e(f's_add_u32 s58, s58, {W2F}')
    e('s_mul_i32 s61, s46, 7'); e('s_add_u32 s61, s61, s44')
    e('s_lshl_b32 s59, s61, 15'); e(f's_add_u32 s59, s59, {W1F}')
    e('s_cmp_eq_u32 s44, 7'); e('s_cselect_b32 s59, s58, s59'); e('s_cselect_b32 s60, 25, 1'); e('s_lshl_b32 s60, s60, 12')
    e(f's_mul_i32 s62, s45, {2*112*1024}'); e(f's_add_u32 s62, s62, {AF}')
    e('s_lshl_b32 s63, s61, 11'); e('s_add_u32 s63, s63, s62')
    e('s_add_u32 s62, s62, s48')
    e('s_lshl_b32 s16, s45, 8'); e(f's_add_u32 s16, s16, {FLG}')
    e('s_lshl_b32 s48, s44, 11'); e('v_add_u32 v10, s48, v4')
    e('s_lshl_b32 s48, s44, 14'); e('v_add_u32 v11, s48, v4')
    def wld(n):
        r = [f'buffer_load_dwordx4 {vr(W+4*n,4)}, v4, s[32:35], s59 offen offset:{(n%4)*1024}']
        if n % 4 == 3 and n < 31: r.append('s_add_u32 s59, s59, ' + ('s60' if n == 15 else '4096'))
        return r
    wq = [wld(n) for n in range(32)]
    stamp(em, 1)
    for k in range(32):
        b = fb(k)
        for qi in range(2):
            for mi in range(2): e(mfma(ACC + 16 * (mi + 2 * qi), b + 4 * mi, b + 8 + 4 * qi, '0' if k == 0 else None))
        if k + D < 32: weave(em, [], ld(k + D))
        elif k < 31: weave(em, [], wq[:4]); wq = wq[4:]
        if k == 24: e(f'buffer_load_dwordx4 {vr(RES,4)}, v9, s[20:23], s55 offen')
    stamp(em, 2)
    def reduce(fill):
        e('v_add_u32 v5, 0x10000, v10')
        wr = [f'ds_write_b128 v{5 if d >= 4 else 10}, {vr(ACC+8*d+4*i,4)} offset:{(d&3)*16384+i*1024}' for d in range(8) for i in range(2)]
        n1 = len(fill) // 2
        weave(em, wr, fill[:n1])
        em.wait(lg=0); e('s_barrier')
        rd = [f'ds_read_b128 {vr(ACC+8*s+4*i,4)}, v11 offset:{s*2048+i*1024}' for s in range(8) for i in range(2)]
        weave(em, rd, fill[n1:])
        for s in (0, 2, 4, 6):
            for i in range(8): e(f'v_add_f32 v{ACC+8*s+i}, v{ACC+8*s+i}, v{ACC+8*s+8+i}')
            if s in (2, 6):
                for i in range(8): e(f'v_add_f32 v{ACC+8*s-16+i}, v{ACC+8*s-16+i}, v{ACC+8*s+i}')
        for i in range(8): e(f'v_add_f32 v{ACC+i}, v{ACC+i}, v{ACC+32+i}')
    def unpack(dst):
        for c in range(4): e(f'v_lshlrev_b32 v{dst+2*c}, 16, v{RES+c}'); e(f'v_and_b32 v{dst+1+2*c}, 0xffff0000, v{RES+c}')
    for j in range(2): e(f'v_permlane32_swap_b32 v{RES+j}, v{RES+2+j}')
    unpack(80)
    npre = NPRE - (32 - len(wq))
    reduce(wq[:npre]); wq = wq[npre:]
    C = ACC
    for i in range(8): e(f'v_add_f32 v{C+i}, v{C+i}, v{80+i}')
    for c in range(4): e(f'v_cvt_pk_bf16_f32 v{RES+c}, v{C+2*c}, v{C+2*c+1}')
    e(f'buffer_store_dwordx4 {vr(RES,4)}, v4, s[32:35], s56 offen sc1', tag='h')
    unpack(C)
    e(f'v_add_f32 v80, v{C}, v{C+1}')
    for i in range(2, 8): e(f'v_add_f32 v80, v80, v{C+i}')
    e('v_mov_b32 v81, v80'); e('v_permlane32_swap_b32 v80, v81'); e('v_add_f32 v80, v80, v81')
    e('v_mul_f32 v82, 0x3d800000, v80')
    for i in range(8): e(f'v_sub_f32 v{C+i}, v{C+i}, v82')
    e(f'v_mul_f32 v81, v{C}, v{C}')
    for i in range(1, 8): e(f'v_fmac_f32 v81, v{C+i}, v{C+i}')
    e('v_mov_b32 v82, v81'); e('v_permlane32_swap_b32 v81, v82'); e('v_add_f32 v81, v81, v82')
    e('v_lshlrev_b32 v83, 3, v2'); e('v_lshlrev_b32 v84, 30, v3'); e('v_add_u32 v84, v83, v84')
    e('buffer_store_dwordx2 v[80:81], v84, s[32:35], s57 offen sc1', tag='h')
    weave(em, [], wq)
    e('s_and_b32 s48, s44, 3'); e('s_lshl_b32 s48, s48, 10'); e('s_lshl_b32 s49, s52, 15'); e('s_add_u32 s64, s48, s49')
    e('s_lshl_b32 s65, s45, 16'); e('s_add_u32 s65, s65, s64'); e(f's_add_u32 s65, s65, {HF}')
    e(f'v_add_u32 v6, {128*1024}, v83')
    em.wait_tag('h')
    stamp(em, 3)
    e('s_barrier')
    def hdma():
        for i in range(8):
            e(f's_add_u32 m0, s64, {i*4096}'); e('buffer_load_dwordx4 v4, s[32:35], s65 offen sc1 lds', tag='hd'); e('s_add_u32 s65, s65, 4096')
    L7, LJ = em.newlabel('w7'), em.newlabel('tj')
    e('s_cmp_eq_u32 s44, 7'); e(f's_cbranch_scc1 {L7}')
    st = em.state()
    CS, BR, NB = 48, 80, 8
    for i in range(4): e(f'v_mov_b32 v{112+i}, 0x3f803f80')
    for k in range(32): e(mfma(CS, W + 4 * k, 112, '0' if k == 0 else None))
    e('s_barrier')
    stamp(em, 4)
    hdma()
    em.wait_tag('hd'); e('s_barrier')
    stamp(em, 5)
    def rd(n): return f'ds_read_b128 {vr(BR+4*(n%NB),4)}, v4 offset:{(n&1)*32768+(n>>1)*1024}'
    for n in range(NB - 1): e(rd(n))
    for n in range(64):
        k, qi = n >> 1, n & 1
        if n + NB - 1 < 64: e(rd(n + NB - 1))
        e(mfma(ACC + 16 * qi, W + 4 * k, BR + 4 * (n % NB), '0' if k == 0 else None))
        if qi and (k & 15) < 14:
            e(f'buffer_load_dwordx4 {vr(W+4*k,4)}, v4, s[32:35], s58 offen offset:{(k%4)*1024}')
            if k % 4 == 3: e('s_add_u32 s58, s58, 4096')
            if k == 13: e(f's_add_u32 s58, s58, {100*1024}')
        if n == 56:
            e('s_barrier')
            e('ds_read_b64 v[116:117], v6'); e('ds_read_b64 v[118:119], v6 offset:256')
    stamp(em, 6)
    e('v_mov_b32 v120, 0')
    for qi in range(2):
        for c in range(2):
            a = ACC + 16 * qi + 8 * c; d = 64 + 8 * qi + 4 * c
            for j in range(8): e(f'v_fma_f32 v{a+j}, -v{116+2*qi}, v{CS+8*c+j}, v{a+j}')
            for j in range(4): e(f'v_cvt_pk_bf16_f32 v{d+j}, v{a+2*j}, v{a+2*j+1}')
            for j in range(4): e(f'v_pk_max_i16 v{d+j}, v{d+j}, v120')
            e(f'buffer_store_dwordx4 {vr(d,4)}, v4, s[32:35], s63 offen offset:{c*1024} sc1')
        if qi == 0: e(f's_add_u32 s63, s63, {112*1024}')
    em.wait(vm=0, lg=0)
    e('s_barrier')
    e(f's_branch {LJ}')
    em.label(L7); em.set_state(st)
    e(f's_mov_b32 s48, {OOB}'); e('v_mov_b32 v84, s48'); e('s_lshl_b32 s48, s46, 2'); e('v_mov_b32 v85, s48')
    e('v_cmp_eq_u32 vcc, 0, v1'); e('v_cndmask_b32 v86, v84, v85, vcc')
    e('v_lshlrev_b32 v85, 2, v1'); e('v_cmp_gt_u32 vcc, 8, v1'); e('v_cndmask_b32 v87, v84, v85, vcc')
    e('v_cndmask_b32 v88, 0, 4, vcc')
    def signal(val):
        e(f'v_mov_b32 v89, {val}'); e('buffer_store_dword v89, v86, s[32:35], s16 offen sc1')
        lp, dn = em.newlabel('pl'), em.newlabel('pd')
        e('s_mov_b32 s48, 0x40000')
        em.label(lp)
        e('buffer_load_dword v90, v87, s[32:35], s16 offen sc1'); em.wait_force('vmcnt(0)')
        e('v_and_b32 v90, v90, v88'); e('v_cmp_ne_u32 vcc, v90, v88')
        e('s_sub_u32 s48, s48, 1'); e('s_cmp_eq_u32 s48, 0'); e(f's_cbranch_scc1 {dn}')
        e(f's_cbranch_vccnz {lp}')
        em.label(dn)
    signal(7)
    e('s_barrier')
    stamp(em, 4)
    hdma()
    e('v_lshlrev_b32 v84, 13, v3'); e('v_add_u32 v84, v84, v83')
    e('s_lshl_b32 s48, s45, 14'); e(f's_add_u32 s48, s48, {STATS}')
    for b in range(32):
        if b == 16: e('s_add_u32 s48, s48, 4096')
        e(f'buffer_load_dwordx2 v[{16+2*b}:{17+2*b}], v84, s[32:35], s48 offen offset:{(b%16)*256} sc1')
    em.wait_tag('hd'); e('s_barrier')
    stamp(em, 5)
    e('v_add_f32 v92, v16, v18'); e('v_add_f32 v93, v17, v19')
    for b in range(2, 32): e(f'v_add_f32 v92, v92, v{16+2*b}'); e(f'v_add_f32 v93, v93, v{17+2*b}')
    e('v_mul_f32 v92, 0x3b000000, v92'); e('v_mov_b32 v94, 0'); e('s_mov_b32 s48, 0x3d800000')
    for b in range(32): e(f'v_fma_f32 v{16+2*b}, v{16+2*b}, s48, -v92'); e(f'v_fmac_f32 v94, v{16+2*b}, v{16+2*b}')
    e('v_fmac_f32 v93, 0x41800000, v94')
    e('v_mov_b32 v94, 0x3727c5ac'); e('v_fmac_f32 v94, 0x3b000000, v93'); e('v_rsq_f32 v93, v94')
    e('v_lshlrev_b32 v84, 3, v1'); e(f'v_add_u32 v84, {128*1024}, v84'); e('ds_write_b64 v84, v[92:93]')
    em.wait(lg=0); e('s_barrier')
    stamp(em, 6)
    e('v_lshlrev_b32 v88, 1, v88')
    e('s_barrier')
    signal(15)
    em.label(LJ); em.hist = []; em.vm = []; em.lg = []
    e('s_lshl_b32 s48, s52, 8'); e('v_add_u32 v6, s48, v6'); e('ds_read_b32 v3, v6 offset:4')
    e(f'v_add_u32 v7, {112*1024}, v4')
    e('s_barrier')
    stamp(em, 7)
    AS = [80 + 4 * i for i in range(12)] + [W + 4 * i for i in (14, 15, 30, 31)]
    def ald(k):
        r = [f'buffer_load_dwordx4 {vr(AS[(2*k+qi)%16],4)}, v{7 if qi else 4}, s[32:35], s62 offen offset:{(k%4)*1024} sc1' for qi in range(2)]
        if k % 4 == 3: r.append('s_add_u32 s62, s62, 4096')
        return r
    AD = env('AD', 6)
    for k in range(AD): weave(em, [], ald(k))
    for k in range(14):
        for qi in range(2):
            for mi in range(2): e(mfma(ACC + 16 * (mi + 2 * qi), W + 4 * (16 * mi + k), AS[(2*k+qi)%16], '0' if k == 0 else None))
        if k + AD < 14: weave(em, [], ald(k + AD))
    stamp(em, 8)
    unpack(80)
    reduce([])
    for i in range(8): e(f'v_fma_f32 v{C+i}, v{C+i}, v3, v{80+i}')
    for c in range(4): e(f'v_cvt_pk_bf16_f32 v{RES+c}, v{C+2*c}, v{C+2*c+1}')
    for j in range(2): e(f'v_permlane32_swap_b32 v{RES+j}, v{RES+2+j}')
    e(f'buffer_store_dwordx4 {vr(RES,4)}, v9, s[24:27], s55 offen')
    stamp_out(em, kidx, 32, 44, 9, vt=2)
    em.label(END); e('s_endpgm')
    em.end_kernel(name, 256, 256)
    em.launch(name, 256, 512, 128 * 1024 + 512)
```

```python
import sys
from em import Em
from k1 import gen_k1
NAME = "sequential_preLN__compressed_kv_cla__dense_activation_relu__prompt"
hdr = open(f'cdna_kernels/{NAME}.s.ref').read().split('; Override launch')[0]
em = Em()
which = sys.argv[2] if len(sys.argv) > 2 else '12345'
if 'F' in which:
    from kf import gen_kf; gen_kf(em)
if '1' in which: gen_k1(em)
if '2' in which:
    from k2 import gen_k2; gen_k2(em)
if '3' in which:
    from k3 import gen_k3; gen_k3(em)
if '4' in which:
    from k4 import gen_k4; gen_k4(em)
if '5' in which:
    from k3 import gen_k5; gen_k5(em)
if 'T' in which:
    from kt import gen_kt; gen_kt(em)
open(sys.argv[1], 'w').write(em.text(hdr))
print('instr', em.ninstr, 'nops', em.nnop)
```
